```python
import torch

def _softmax(x, axis=-1):
    return torch.softmax(x, dim=axis)
def _gelu(x):
    return torch.nn.functional.gelu(x, approximate="tanh")
def _silu(x):
    return torch.nn.functional.silu(x)
def _sigmoid(x):
    return torch.sigmoid(x)
def _layernorm(x, axis=-1, eps=1e-5):
    m = x.mean(dim=axis, keepdim=True)
    v = x.var(dim=axis, keepdim=True, unbiased=False)
    return (x - m) / torch.sqrt(v + eps)
def _scatter_add(tgt, idx, src, axis=0):
    return tgt.clone().index_add_(axis, idx, src)
def _segment_sum(src, seg, n):
    out = torch.zeros((n,) + src.shape[1:], dtype=src.dtype)
    return out.index_add_(0, seg, src)
def _pad(x, pw):
    flat = tuple(v for pair in reversed(pw) for v in pair)
    return torch.nn.functional.pad(x, flat)

kernel_name = 'gated_mix__mha_block__linear_kernel_hedgehog__prompt'

def setup_inputs():

    _w = (lambda a: (lambda t: t.to(torch.bfloat16) if t.is_floating_point() else t)(torch.as_tensor(a)))
    def _A_setup():
        B, S, D, H = 1, 2048, 512, 32
        return {
            "x": _w((lambda *s: torch.randn(*s, dtype=torch.bfloat16) * 0.05)(B, S, D)),
            "wqkv": _w((lambda *s: torch.randn(*s, dtype=torch.bfloat16) * 0.8)(D, 3 * D)),
            "wo": _w((lambda *s: torch.randn(*s, dtype=torch.bfloat16) * 0.05)(D, D)),
        }
    _A_in = _A_setup()

    def _B_setup():
        B, S, D, H = 1, 2048, 512, 32
        Dh = D // H
        return {
            "x": _w((lambda *s: torch.randn(*s, dtype=torch.bfloat16) * 0.05)(B, S, D)),
            "wqkv": _w((lambda *s: torch.randn(*s, dtype=torch.bfloat16) * 1.6)(D, 3 * D)),
            "w_phi": _w((lambda *s: torch.randn(*s, dtype=torch.bfloat16) * 1.6)(H, Dh, Dh) * (Dh ** -0.5)),
            "wo": _w((lambda *s: torch.randn(*s, dtype=torch.bfloat16) * 0.05)(D, D)),
        }
    _B_in = _B_setup()

    return {
        "A_x": _A_in["x"],
        "A_wqkv": _A_in["wqkv"],
        "A_wo": _A_in["wo"],
        "B_x": _B_in["x"],
        "B_wqkv": _B_in["wqkv"],
        "B_w_phi": _B_in["w_phi"],
        "B_wo": _B_in["wo"],
        "gate_w": _w((lambda *s: torch.randn(*s, dtype=torch.bfloat16) * 0.05)(512) * 16.0),
    }

def reference(A_x, A_wqkv, A_wo, B_x, B_wqkv, B_w_phi, B_wo, gate_w):
    def _A_ref(x, wqkv, wo):
        B, S, D = x.shape
        H = 32
        Dh = D // H
        qkv = (lambda x, *d: x.permute(*d))((x @ wqkv).reshape(B, S, 3, H, Dh), 2, 0, 3, 1, 4)
        q, k, v = qkv[0], qkv[1], qkv[2]
        scores = torch.einsum("bhqd,bhkd->bhqk", q, k) * (Dh ** -0.5)
        p = _softmax(scores, axis=-1)
        o = torch.einsum("bhqk,bhkd->bhqd", p, v)
        return (lambda x, *d: x.permute(*d))(o, 0, 2, 1, 3).reshape(B, S, D) @ wo

    def _B_ref(x, wqkv, w_phi, wo):
        B, S, D = x.shape
        H = 32; Dh = D // H
        qkv = (lambda x, *d: x.permute(*d))((x @ wqkv).reshape(B, S, 3, H, Dh), 2, 0, 3, 1, 4)
        q, k, v = qkv[0], qkv[1], qkv[2]
        pq = torch.einsum("bhsd,hdf->bhsf", q, w_phi)
        pk = torch.einsum("bhsd,hdf->bhsf", k, w_phi)
        phi_q = torch.concatenate([_softmax(pq, axis=-1), _softmax(-pq, axis=-1)], axis=-1)
        phi_k = torch.concatenate([_softmax(pk, axis=-1), _softmax(-pk, axis=-1)], axis=-1)
        kv = torch.einsum("bhsf,bhsd->bhfd", phi_k, v)
        z  = torch.einsum("bhsf->bhf", phi_k)
        num = torch.einsum("bhqf,bhfd->bhqd", phi_q, kv)
        den = torch.einsum("bhqf,bhf->bhq", phi_q, z)[..., None] + 1e-6
        o = num / den
        return (lambda x, *d: x.permute(*d))(o, 0, 2, 1, 3).reshape(B, S, D) @ wo

    x = A_x
    g = _sigmoid((x * gate_w).sum(-1, keepdims=True))
    a = _A_ref(x, A_wqkv, A_wo)
    b = _B_ref(x, B_wqkv, B_w_phi, B_wo)
    return g * a + (1 - g) * b
```

```python
import re

TRANS = ("v_exp_f32", "v_log_f32", "v_rcp_f32", "v_rsq_f32", "v_sqrt_f32", "v_sin_f32", "v_cos_f32",
         "v_exp_f16", "v_rcp_f16", "v_rcp_iflag_f32")

def regs_of(tok):
    tok = tok.strip()
    tok = tok.lstrip("-")
    m = re.fullmatch(r"abs\((.*)\)", tok)
    if m: tok = m.group(1)
    m = re.fullmatch(r"\|(.*)\|", tok)
    if m: tok = m.group(1)
    m = re.fullmatch(r"([vsa])(\d+)", tok)
    if m: return {(m.group(1), int(m.group(2)))}
    m = re.fullmatch(r"([vsa])\[(\d+):(\d+)\]", tok)
    if m: return {(m.group(1), i) for i in range(int(m.group(2)), int(m.group(3)) + 1)}
    if tok == "vcc": return {("s", 106), ("s", 107)}
    if tok == "exec": return {("s", 126), ("s", 127)}
    if tok == "m0": return {("s", 124)}
    return set()

class Ins:
    def __init__(self, text):
        self.text = text
        t = text.split(";")[0].strip()
        self.is_label = t.endswith(":")
        self.is_dir = t.startswith(".") or t == ""
        self.op = ""
        self.rd = set(); self.wr = set()
        self.A = set(); self.B = set(); self.C = set()
        self.kind = "other"
        if self.is_label or self.is_dir:
            return
        parts = t.split(None, 1)
        self.op = op = parts[0]
        ops = []
        if len(parts) > 1:
            ops = [o.strip() for o in re.split(r",(?![^\[]*\])", parts[1])]
            last = ops[-1].split()
            self.mods = last[1:]
            ops[-1] = last[0] if last else ""
        else:
            self.mods = []
        R = [regs_of(o) for o in ops]
        def u(l):
            s = set()
            for x in l: s |= x
            return s
        if op.startswith("v_mfma") or op.startswith("v_smfmac"):
            self.kind = "mfma"
            self.wr = R[0]; self.A = R[1]; self.B = R[2]; self.C = R[3]
            self.rd = u(R[1:])
            self.passes = 8 if "32x32" in op else 4
        elif op.startswith("v_cmp"):
            self.kind = "valu"; self.wr = R[0]; self.rd = u(R[1:])
        elif op.startswith("v_readfirstlane") or op.startswith("v_readlane"):
            self.kind = "valu"; self.wr = R[0]; self.rd = u(R[1:]); self.lane = True
        elif op.startswith("v_permlane"):
            self.kind = "valu"; self.wr = u(R); self.rd = u(R)
        elif op.startswith("v_"):
            self.kind = "valu"; self.wr = R[0]; self.rd = u(R[1:])
            if op.startswith("v_fmac") or op.startswith("v_dot2c") or "_dpp" in op or "UNUSED_PRESERVE" in t:
                self.rd |= R[0]
            if op.startswith("v_add_co") or op.startswith("v_addc_co") or op.startswith("v_sub_co"):
                self.wr = R[0] | R[1]; self.rd = u(R[2:])
        elif op.startswith("ds_read") or op.startswith("ds_bpermute") or op.startswith("ds_swizzle"):
            self.kind = "ds"; self.wr = R[0]; self.rd = u(R[1:])
        elif op.startswith("ds_"):
            self.kind = "ds"; self.rd = u(R)
        elif op.startswith("buffer_load") or op.startswith("global_load"):
            self.kind = "vmem"
            if "lds" in self.mods or "_lds_" in op:
                self.rd = u(R) | {("s", 124)}; self.ldsdma = True
            else:
                self.wr = R[0]; self.rd = u(R[1:])
                if "d16" in op: self.rd |= R[0]
        elif op.startswith("buffer_store") or op.startswith("global_store") or op.startswith("buffer_atomic") or op.startswith("global_atomic"):
            self.kind = "vmem"; self.rd = u(R)
            self.store = True
            self.data = R[0] if op.startswith("buffer") else R[1]
        elif op.startswith("s_"):
            self.kind = "salu"
            if op.startswith("s_cmp") or op.startswith("s_cbranch") or op in ("s_nop", "s_waitcnt", "s_barrier", "s_branch", "s_endpgm", "s_sleep", "s_setprio"):
                self.rd = u(R)
            else:
                self.wr = R[0] if R else set(); self.rd = u(R[1:])
                if "saveexec" in op: self.wr = self.wr | {("s", 126), ("s", 127)}
        self.states = 1
        if op == "s_nop": self.states = int(ops[0], 0) + 1

def vonly(s): return {r for r in s if r[0] in "va"}
def sonly(s): return {r for r in s if r[0] == "s"}

def need(p, c):
    n = 0
    if p.kind == "mfma":
        P = p.passes
        d = p.wr
        if c.kind == "mfma":
            if d & (c.A | c.B): n = max(n, {4: 8, 8: 12}[P])
            if d & c.C:
                if not (c.C == d and c.passes == P): n = max(n, {4: 6, 8: 10}[P])
            elif d & c.wr:
                n = max(n, {4: 6, 8: 10}[P])
        elif c.kind in ("valu", "ds", "vmem"):
            if d & (c.rd | c.wr): n = max(n, {4: 8, 8: 12}[P])
        if c.kind == "valu" and (p.C & vonly(c.wr)): n = max(n, {4: 3, 8: 7}[P])
    if p.kind == "valu":
        vw = vonly(p.wr); sw = sonly(p.wr)
        if c.kind == "mfma" and (vw & c.rd): n = max(n, 2)
        if c.kind == "valu":
            if p.op in TRANS or any(p.op.startswith(x) for x in TRANS):
                if (vw & c.rd) and not any(c.op.startswith(x) for x in TRANS): n = max(n, 1)
                if (vw & c.rd): n = max(n, 1)
            if c.op.startswith("v_permlane") and (vw & c.rd): n = max(n, 2)
            if "_dpp" in c.op and (vw & c.rd): n = max(n, 2)
            if getattr(c, "lane", False) and (vw & c.rd): n = max(n, 1)
            if sw & c.rd:
                n = max(n, 4 if getattr(c, "lane", False) else 2)
            if ("sdwa" in p.op or "op_sel" in p.text) and (vw & (c.rd | c.wr)): n = max(n, 1)
        if c.kind == "vmem" and (sw & c.rd): n = max(n, 5)
        if c.kind == "mfma" and (sw & {("s", 126), ("s", 127)}): n = max(n, 4)
    if p.kind == "vmem" and getattr(p, "store", False) and len(p.data) >= 3:
        if c.kind == "valu" and (p.data & c.wr): n = max(n, 2)
        elif p.data & c.wr: n = max(n, 1)
    if p.kind == "salu" and (("s", 124) in p.wr) and getattr(c, "ldsdma", False): n = max(n, 1)
    return n

def fix_hazards(lines, verbose=False):
    out = []
    hist = []
    nins = 0
    for t in lines:
        c = Ins(t)
        if c.is_label or c.is_dir:
            out.append(c); continue
        req = 0; dist = 0
        for p in reversed(hist[-24:]):
            r = need(p, c) - dist
            if r > req: req = r
            dist += p.states
            if dist >= 20: break
        if req > 0:
            nop = Ins(f"s_nop {req-1}")
            out.append(nop); hist.append(nop); nins += 1
            if verbose: print("nop", req, "before", t.strip())
        out.append(c); hist.append(c)
    return out, nins

def check_branches(instrs):
    labels = {}
    for i, c in enumerate(instrs):
        if c.is_label: labels[c.text.split(";")[0].strip()[:-1]] = i
    probs = []
    for i, c in enumerate(instrs):
        if c.op.startswith("s_cbranch") or c.op == "s_branch":
            tgt = c.text.split(";")[0].split()[1]
            if tgt not in labels: continue
            pre = [x for x in instrs[max(0, i - 30):i + 1] if not (x.is_label or x.is_dir)]
            post = [x for x in instrs[labels[tgt]:labels[tgt] + 30] if not (x.is_label or x.is_dir)]
            d0 = 0
            for q in post:
                dist = d0
                for p in reversed(pre):
                    if need(p, q) > dist: probs.append((p.text.strip(), q.text.strip(), need(p, q), dist))
                    dist += p.states
                    if dist >= 20: break
                d0 += q.states
                if d0 >= 20 or q.op == "s_branch": break
    return probs

class Asm:
    def __init__(self):
        self.l = []
    def __call__(self, s):
        for x in s.split("\n"):
            x = x.strip()
            if x: self.l.append(x)
    def label(self, n): self.l.append(n + ":")
    def finish(self, verbose=False):
        ins, n = fix_hazards(self.l, verbose)
        pr = check_branches(ins)
        for p in pr: print("BRANCH HAZARD", p)
        assert not pr
        return "\n".join(("" if c.is_label else "    ") + c.text for c in ins), n

def vr(b, n=1): return f"v{b}" if n == 1 else f"v[{b}:{b+n-1}]"
def sr(b, n=1): return f"s{b}" if n == 1 else f"s[{b}:{b+n-1}]"
```

```python
import sys, struct
from asmlib import *

NAME = "gated_mix__mha_block__linear_kernel_hedgehog__prompt"
DEBUG_TS = "--ts" in sys.argv
FORCE_SLOW = "--force-slow" in sys.argv

EPOCH = 0
FLGA = 0x1000; FLGP = 0x5000; FLGK = 0x7000; FLGO = 0x9000
QA = 0x100000; KA = 0x300000; VA = 0x500000; PHQ = 0x700000; KVP = 0xB00000
OA = 0xD00000; OB = 0xF00000; TS = 0x1200000
WS_SIZE = 0x1400000

def f32(x): return "0x%08x" % struct.unpack("<I", struct.pack("<f", x))[0]
LOG2E = 1.4426950408889634
M32 = "v_mfma_f32_32x32x16_bf16"

sTAG = 26
sX, sW0, sW1, sW2, sWS, sPHI, sOUT, sWOA, sWOB, sG = 28, 32, 36, 40, 44, 48, 52, 56, 60, 64
sWave, sHq, sType, sRb, sRt, sCg, sH, sC, sT, sHa = 68, 69, 70, 71, 72, 73, 74, 75, 76, 77
t0, t1, t2, t3, t4, t5 = 78, 79, 80, 81, 82, 83
sXoff, sWoff, sLdsX, sLdsW = 84, 85, 86, 87
sL2E, sCnt = 88, 89
sTS = 90

a = Asm()
nts = [0]
def stamp():
    if not DEBUG_TS: return
    i = nts[0]; nts[0] += 1
    assert i < 12
    a(f"s_memrealtime s[{t4}:{t5}]")
    a("s_waitcnt lgkmcnt(0)")
    a(f"s_mov_b32 s{sTS+i}, s{t4}")

def srd(d, plo, nbytes):
    a(f"s_mov_b32 s{d}, s{plo}")
    a(f"s_and_b32 s{d+1}, s{plo+1}, 0xffff")
    a(f"s_mov_b32 s{d+2}, {nbytes}")
    a(f"s_mov_b32 s{d+3}, 0x20000")

npoll = [0]
def poll(vaddr, vpair):
    n = npoll[0]; npoll[0] += 1
    a(f"s_mov_b32 s{sCnt}, 0x100000")
    a.label(f"L_poll{n}")
    a(f"buffer_load_dwordx2 {vr(vpair,2)}, v{vaddr}, {sr(sWS,4)}, 0 offen sc1")
    a("s_waitcnt vmcnt(0)")
    a(f"v_cmp_ne_u64 vcc, {sr(sTAG,2)}, {vr(vpair,2)}")
    a(f"s_cmp_eq_u64 vcc, 0")
    a(f"s_cbranch_scc1 L_polld{n}")
    a(f"s_sub_u32 s{sCnt}, s{sCnt}, 1")
    a(f"s_cmp_eq_u32 s{sCnt}, 0")
    a(f"s_cbranch_scc1 L_polld{n}")
    a("s_sleep 1")
    a(f"s_branch L_poll{n}")
    a.label(f"L_polld{n}")

vTAG = 250
vZERO = 252
def post_flag(soff):
    a("s_waitcnt vmcnt(0)")
    a("s_mov_b64 exec, 1")
    a(f"buffer_store_dwordx2 {vr(vTAG,2)}, v{vZERO}, {sr(sWS,4)}, s{soff} offen sc1")
    a("s_mov_b64 exec, -1")

vLane = 1; vL16 = 17
vPhiRaw = 4
vXa0, vXa1, vWa = 8, 9, 10
vXr = 11; vWr = 15
vXf = 20; vWf = 28; vAcc = 52
vI = 100; vPhi = 108

a("s_cmp_ge_u32 s2, 256")
a("s_cbranch_scc1 L_end")
a("s_load_dwordx16 s[4:19], s[0:1], 0")
a("s_load_dwordx4 s[20:23], s[0:1], 64")
a("s_load_dwordx2 s[24:25], s[0:1], 80")
a("v_lshrrev_b32 v2, 6, v0")
a(f"v_and_b32 v{vLane}, 63, v0")
a(f"v_readfirstlane_b32 s{sWave}, v2")
a(f"s_and_b32 s{sHq}, s2, 7")
a(f"s_lshr_b32 s{t0}, s2, 3")
a(f"s_and_b32 s{sType}, s{t0}, 1")
a(f"s_lshr_b32 s{sRb}, s{t0}, 1")
a(f"s_and_b32 s{t1}, s{t0}, 3")
a(f"s_lshl_b32 s{sH}, s{sHq}, 2")
a(f"s_add_u32 s{sH}, s{sH}, s{t1}")
a(f"s_lshr_b32 s{sC}, s{t0}, 2")
a(f"s_and_b32 s{sRt}, s{sWave}, 3")
a(f"s_lshr_b32 s{sCg}, s{sWave}, 2")
a(f"s_lshl_b32 s{sT}, s{sRb}, 2")
a(f"s_add_u32 s{sT}, s{sT}, s{sRt}")
a(f"s_lshl_b32 s{sHa}, s{sHq}, 2")
a(f"s_lshl_b32 s{t1}, s{sCg}, 1")
a(f"s_add_u32 s{sHa}, s{sHa}, s{t1}")
a(f"v_lshlrev_b32 v{vL16}, 4, v{vLane}")
a(f"v_lshrrev_b32 v2, 3, v{vLane}")
a(f"v_and_b32 v3, 7, v{vLane}")
a(f"v_bfe_u32 v18, v{vLane}, 4, 2")
a(f"v_xor_b32 v18, v18, v3")
a(f"v_lshlrev_b32 v18, 4, v18")
a(f"v_lshl_add_u32 v{vXa0}, v2, 10, v18")
a(f"v_xor_b32 v{vXa1}, 64, v{vXa0}")
a(f"v_add_u32 v{vXa1}, 7168, v{vXa1}")
a(f"v_bfe_u32 v18, v{vLane}, 4, 1")
a(f"v_lshlrev_b32 v18, 2, v18")
a(f"v_xor_b32 v18, v18, v3")
a(f"v_lshlrev_b32 v18, 4, v18")
a(f"v_mul_u32_u24 v{vWa}, 3072, v2")
a(f"v_add_u32 v{vWa}, v{vWa}, v18")
a(f"s_lshl_b32 s{sXoff}, s{sRb}, 17")
a(f"s_lshl_b32 s{t1}, s{sWave}, 14")
a(f"s_add_u32 s{sXoff}, s{sXoff}, s{t1}")
a(f"s_mul_i32 s{sWoff}, s{sWave}, {8*3072}")
a(f"s_lshl_b32 s{sLdsX}, s{sWave}, 11")
a(f"s_lshl_b32 s{sLdsW}, s{sWave}, 10")
a(f"s_add_u32 s{sLdsW}, s{sLdsW}, 65536")
a(f"s_lshl_b32 s{t2}, s{sHq}, 7")
a("s_waitcnt lgkmcnt(0)")
a(f"s_load_dwordx2 {sr(sTAG,2)}, s[24:25], {EPOCH}")
srd(sX, 4, 2048*512*2)
WB = 512*1536*2
a(f"s_cmp_eq_u32 s{sType}, 0")
a(f"s_cselect_b32 s{t0}, 0, 2048")
a(f"s_cselect_b32 s{sW1}, s6, s12")
a(f"s_cselect_b32 s{sW1+1}, s7, s13")
a(f"s_add_u32 s{t0}, s{t0}, s{t2}")
a(f"s_add_u32 s{t1}, s{t2}, 1024")
a(f"s_add_u32 s{sW0}, s6, s{t0}")
a(f"s_addc_u32 s{sW0+1}, s7, 0")
a(f"s_and_b32 s{sW0+1}, s{sW0+1}, 0xffff")
a(f"s_sub_u32 s{sW0+2}, {WB}, s{t0}")
a(f"s_mov_b32 s{sW0+3}, 0x20000")
a(f"s_add_u32 s{sW1}, s{sW1}, s{t1}")
a(f"s_addc_u32 s{sW1+1}, s{sW1+1}, 0")
a(f"s_and_b32 s{sW1+1}, s{sW1+1}, 0xffff")
a(f"s_sub_u32 s{sW1+2}, {WB}, s{t1}")
a(f"s_mov_b32 s{sW1+3}, 0x20000")
a(f"s_add_u32 s{sW2}, s12, s{t0}")
a(f"s_addc_u32 s{sW2+1}, s13, 0")
a(f"s_and_b32 s{sW2+1}, s{sW2+1}, 0xffff")
a(f"s_sub_u32 s{sW2+2}, {WB}, s{t0}")
a(f"s_mov_b32 s{sW2+3}, 0x20000")

def dma_stage(slot):
    a(f"s_add_u32 m0, s{sLdsX}, {slot*16384}")
    a(f"s_nop 0")
    a(f"buffer_load_dwordx4 v{vXa0}, {sr(sX,4)}, s{sXoff} offen lds")
    a(f"buffer_load_dwordx4 v{vXa1}, {sr(sX,4)}, s{sXoff} offen offset:1024 lds")
    for seg, sw in enumerate((sW0, sW1, sW2)):
        a(f"s_add_u32 m0, s{sLdsW}, {slot*24576 + seg*8192}")
        if seg == 0: a(f"s_add_u32 s{sXoff}, s{sXoff}, 128")
        else: a("s_nop 0")
        a(f"buffer_load_dwordx4 v{vWa}, {sr(sw,4)}, s{sWoff} offen lds")
    a(f"s_add_u32 s{sWoff}, s{sWoff}, {64*3072}")

stamp()
dma_stage(0)
srd(sPHI, 14, 32*512)
a(f"s_lshl_b32 s{t0}, s{sHa}, 9")
a(f"buffer_load_dwordx4 {vr(vPhiRaw,4)}, v{vL16}, {sr(sPHI,4)}, s{t0} offen")
for s in (1, 2, 3): dma_stage(s)
srd(sWS, 24, WS_SIZE)
srd(sOUT, 20, 2048*512*2)
srd(sWOA, 8, 512*512*2)
srd(sWOB, 16, 512*512*2)
srd(sG, 18, 1024)
a(f"s_mov_b32 s{sL2E}, {f32(LOG2E)}")
a(f"v_and_b32 v2, 31, v{vLane}")
a(f"v_lshrrev_b32 v3, 5, v{vLane}")
a(f"v_bfe_u32 v18, v{vLane}, 1, 3")
a(f"v_xor_b32 v18, v18, v3")
a(f"v_lshlrev_b32 v18, 4, v18")
a(f"s_lshl_b32 s{t0}, s{sRt}, 12")
a(f"v_lshl_add_u32 v18, v2, 7, v18")
a(f"v_add_u32 v{vXr}, s{t0}, v18")
for kk in (1, 2, 3): a(f"v_xor_b32 v{vXr+kk}, {kk*32}, v{vXr}")
a(f"v_bfe_u32 v18, v{vLane}, 2, 2")
a(f"v_lshl_add_u32 v18, v3, 3, v18")
a(f"v_lshlrev_b32 v18, 7, v18")
a(f"v_bfe_u32 v19, v{vLane}, 3, 1")
a(f"v_xor_b32 v19, s{sCg}, v19")
a(f"v_lshl_add_u32 v18, v19, 6, v18")
a(f"v_bfe_u32 v19, v{vLane}, 4, 1")
a(f"v_lshl_add_u32 v18, v19, 5, v18")
a(f"v_and_b32 v19, 3, v{vLane}")
a(f"v_lshl_add_u32 v18, v19, 3, v18")
a(f"v_add_u32 v{vWr}, 65536, v18")
a(f"v_add_u32 v{vWr+1}, {65536+49152}, v18")
a(f"v_lshlrev_b32 v18, 2, v3")
a(f"v_sub_u32 v18, v2, v18")
a(f"v_mov_b32 v19, 0x3f80")
a(f"v_mov_b32 v116, 0x3f800000")
for r in range(8):
    tt = 8*((r & 3) >> 1) + 2*(r & 1) + 16*(r >> 2)
    a(f"v_cmp_eq_u32 s[{t0}:{t1}], {tt}, v18")
    a(f"v_cmp_eq_u32 s[{t2}:{t3}], {tt+1}, v18")
    a(f"v_cndmask_b32 v{vI+r}, 0, v19, s[{t0}:{t1}]")
    a(f"v_cndmask_b32 v{vI+r}, v{vI+r}, v116, s[{t2}:{t3}]")
a(f"v_mov_b32 v{vZERO}, 0")
a("s_waitcnt lgkmcnt(0)")
a(f"s_add_u32 s{sTAG}, s{sTAG}, 0x9e3779b9")
a(f"s_addc_u32 s{sTAG+1}, s{sTAG+1}, 0x7f4a7c15")
a(f"v_mov_b32 v{vTAG}, s{sTAG}")
a(f"v_mov_b32 v{vTAG+1}, s{sTAG+1}")

def reads(i):
    s, kk = i >> 2, i & 3
    slot = s & 3; b = i & 1
    a(f"ds_read_b128 {vr(vXf+4*b,4)}, v{vXr+kk} offset:{slot*16384}")
    for seg in range(3):
        for sec in range(2):
            off = (slot & 1)*24576 + seg*8192 + kk*2048 + sec*512
            a(f"ds_read_b64_tr_b16 {vr(vWf+12*b+4*seg+2*sec,2)}, v{vWr+(slot>>1)} offset:{off}")

def gemm(vtype):
    a("s_waitcnt vmcnt(16)")
    a("s_barrier")
    reads(0)
    for i in range(32):
        s, kk = i >> 2, i & 3
        b = i & 1
        if kk == 3:
            if s < 7:
                n = 5*(min(s+3, 7) - (s+1))
                a(f"s_waitcnt vmcnt({n}) lgkmcnt(0)")
                a("s_barrier")
                reads(i+1)
                if s <= 3: dma_stage(s & 3)
            else:
                a("s_waitcnt lgkmcnt(0)")
        else:
            reads(i+1)
            a("s_waitcnt lgkmcnt(7)")
        for seg in range(3):
            x = vr(vXf+4*b, 4); w = vr(vWf+12*b+4*seg, 4); d = vr(vAcc+16*seg, 16)
            c = "0" if i == 0 else d
            if vtype[seg]: a(f"{M32} {d}, {x}, {w}, {c}")
            else: a(f"{M32} {d}, {w}, {x}, {c}")

def cvt8(dst, src, n=8):
    for i in range(n):
        a(f"v_cvt_pk_bf16_f32 v{dst+i}, v{src+2*i}, v{src+2*i+1}")

def wphi_frags():
    a(f"s_lshl_b32 s{t0}, s{sWave}, 10")
    a(f"v_add_u32 v2, s{t0}, v{vL16}")
    a(f"ds_write_b128 v2, {vr(vPhiRaw,4)}")
    a(f"v_lshrrev_b32 v3, 5, v{vLane}")
    a(f"v_bfe_u32 v18, v{vLane}, 2, 2")
    a(f"v_lshl_add_u32 v18, v3, 2, v18")
    a(f"v_lshlrev_b32 v18, 5, v18")
    a(f"v_and_b32 v19, 3, v{vLane}")
    a(f"v_lshl_add_u32 v18, v19, 3, v18")
    a(f"v_add_u32 v18, s{t0}, v18")
    a(f"v_bfe_u32 v19, v{vLane}, 4, 1")
    a(f"v_mul_u32_u24 v19, 0x8000, v19")
    a(f"v_lshl_or_b32 v19, v19, 16, v19")
    a("s_waitcnt lgkmcnt(0)")
    for u in range(2):
        for sec in range(2):
            a(f"ds_read_b64_tr_b16 {vr(vPhi+4*u+2*sec,2)}, v18 offset:{u*512+sec*256}")

def wphi_sign():
    a("s_waitcnt lgkmcnt(0)")
    for i in range(8): a(f"v_xor_b32 v{vPhi+i}, v19, v{vPhi+i}")

def dual_softmax(D, PH, tmp):
    mp, mn = tmp, tmp+1
    for (m, o) in ((mp, 0), (mn, 8)):
        a(f"v_max3_f32 v{m}, v{D+o}, v{D+o+1}, v{D+o+2}")
    for (m, o) in ((mp, 0), (mn, 8)):
        a(f"v_max3_f32 v{m}, v{m}, v{D+o+3}, v{D+o+4}")
    for (m, o) in ((mp, 0), (mn, 8)):
        a(f"v_max3_f32 v{m}, v{m}, v{D+o+5}, v{D+o+6}")
    for (m, o) in ((mp, 0), (mn, 8)):
        a(f"v_max_f32 v{m}, v{m}, v{D+o+7}")
    a(f"v_permlane32_swap_b32 v{mp}, v{mn}")
    a(f"v_max_f32 v{mp}, v{mp}, v{mn}")
    a(f"v_mul_f32 v{mp}, s{sL2E}, v{mp}")
    a(f"v_mov_b32 v{mn}, v{mp}")
    a(f"v_permlane32_swap_b32 v{mp}, v{mn}")
    for i in range(16):
        a(f"v_fma_f32 v{D+i}, v{D+i}, s{sL2E}, -v{mp if i < 8 else mn}")
    for i in range(16):
        a(f"v_exp_f32 v{D+i}, v{D+i}")
    for (m, o) in ((mp, 0), (mn, 8)):
        a(f"v_add_f32 v{m}, v{D+o}, v{D+o+1}")
    for k in range(2, 8):
        for (m, o) in ((mp, 0), (mn, 8)):
            a(f"v_add_f32 v{m}, v{m}, v{D+o+k}")
    a(f"v_permlane32_swap_b32 v{mp}, v{mn}")
    a(f"v_add_f32 v{mp}, v{mp}, v{mn}")
    a(f"v_rcp_f32 v{mp}, v{mp}")
    a(f"v_mov_b32 v{mn}, v{mp}")
    a(f"v_permlane32_swap_b32 v{mp}, v{mn}")
    for i in range(16):
        a(f"v_mul_f32 v{D+i}, v{D+i}, v{mp if i < 8 else mn}")
    cvt8(PH, D)

def flagA_off(dst):
    a(f"s_lshl_b32 s{dst}, s{sHq}, 1")
    a(f"s_add_u32 s{dst}, s{dst}, s{sType}")
    a(f"s_lshl_b32 s{dst}, s{dst}, 1")
    a(f"s_add_u32 s{dst}, s{dst}, s{sCg}")
    a(f"s_lshl_b32 s{dst}, s{dst}, 6")
    a(f"s_add_u32 s{dst}, s{dst}, s{sT}")
    a(f"s_lshl_b32 s{dst}, s{dst}, 3")
    a(f"s_add_u32 s{dst}, s{dst}, {FLGA}")

a(f"s_cmp_eq_u32 s{sType}, 0")
a("s_cbranch_scc0 L_type2")

gemm([False, False, False])
stamp()
wphi_frags()
a(f"s_lshl_b32 s{t1}, s{sHa}, 16")
a(f"s_lshl_b32 s{t2}, s{sT}, 10")
a(f"s_add_u32 s{t1}, s{t1}, s{t2}")
a(f"s_add_u32 s{t2}, s{t1}, {KA}")
a(f"s_add_u32 s{t3}, s{t1}, {KA+65536}")
cvt8(116, vAcc+16)
a(f"buffer_store_dwordx4 {vr(116,4)}, v{vL16}, {sr(sWS,4)}, s{t2} offen sc1")
a(f"buffer_store_dwordx4 {vr(120,4)}, v{vL16}, {sr(sWS,4)}, s{t3} offen sc1")
a(f"s_mov_b32 s{t0}, {f32(0.25*LOG2E)}")
for i in range(16): a(f"v_mul_f32 v{vAcc+i}, s{t0}, v{vAcc+i}")
a(f"s_add_u32 s{t2}, s{t1}, {QA}")
a(f"s_add_u32 s{t3}, s{t1}, {QA+65536}")
cvt8(124, vAcc)
a(f"buffer_store_dwordx4 {vr(124,4)}, v{vL16}, {sr(sWS,4)}, s{t2} offen sc1")
a(f"buffer_store_dwordx4 {vr(128,4)}, v{vL16}, {sr(sWS,4)}, s{t3} offen sc1")
cvt8(132, vAcc+32)
wphi_sign()
for u in range(2):
    a(f"{M32} {vr(140+16*u,16)}, {vr(vPhi+4*u,4)}, {vr(132+4*u,4)}, 0")
flagA_off(t0)
dual_softmax(140, 172, 2)
post_flag(t0)
stamp()
a(f"s_lshl_b32 s{t1}, s{t1}, 1")
a(f"s_add_u32 s{t2}, s{t1}, {PHQ}")
a(f"s_add_u32 s{t3}, s{t1}, {PHQ+131072}")
a(f"buffer_store_dwordx4 {vr(172,4)}, v{vL16}, {sr(sWS,4)}, s{t2} offen sc1")
a(f"buffer_store_dwordx4 {vr(176,4)}, v{vL16}, {sr(sWS,4)}, s{t2} offen offset:1024 sc1")
dual_softmax(156, 180, 2)
a(f"buffer_store_dwordx4 {vr(180,4)}, v{vL16}, {sr(sWS,4)}, s{t3} offen sc1")
a(f"buffer_store_dwordx4 {vr(184,4)}, v{vL16}, {sr(sWS,4)}, s{t3} offen offset:1024 sc1")
a(f"s_lshl_b32 s{t0}, s{sHq}, 1")
a(f"s_add_u32 s{t0}, s{t0}, s{sCg}")
a(f"s_lshl_b32 s{t0}, s{t0}, 6")
a(f"s_add_u32 s{t0}, s{t0}, s{sT}")
a(f"s_lshl_b32 s{t0}, s{t0}, 3")
a(f"s_add_u32 s{t0}, s{t0}, {FLGP}")
a("s_branch L_p1done")

a.label("L_type2")
if DEBUG_TS: nts[0] = 1
gemm([True, False, True])
stamp()
wphi_frags()
a(f"v_bfe_u32 v2, v{vLane}, 4, 1")
a(f"v_lshlrev_b32 v2, 16, v2")
a(f"v_lshrrev_b32 v3, 5, v{vLane}")
a(f"v_lshl_add_u32 v2, v3, 8, v2")
a(f"v_and_b32 v3, 15, v{vLane}")
a(f"v_lshl_add_u32 v2, v3, 4, v2")
a(f"s_lshl_b32 s{t1}, s{sHa}, 16")
a(f"s_lshl_b32 s{t2}, s{sT}, 10")
a(f"s_add_u32 s{t1}, s{t1}, s{t2}")
a(f"s_add_u32 s{t2}, s{t1}, {VA}")
cvt8(116, vAcc)
a(f"buffer_store_dwordx4 {vr(116,4)}, v2, {sr(sWS,4)}, s{t2} offen sc1")
a(f"buffer_store_dwordx4 {vr(120,4)}, v2, {sr(sWS,4)}, s{t2} offen offset:512 sc1")
cvt8(132, vAcc+16)
wphi_sign()
for u in range(2):
    a(f"{M32} {vr(140+16*u,16)}, {vr(vPhi+4*u,4)}, {vr(132+4*u,4)}, 0")
cvt8(188, vAcc+32)
for i in range(8): a(f"v_mov_b32 v{196+i}, 0x3f803f80")
for i in range(8): a(f"v_permlane16_swap_b32 v{188+i}, v{196+i}")
flagA_off(t0)
dual_softmax(140, 172, 2)
post_flag(t0)
stamp()
a(f"{M32} {vr(140,16)}, {vr(172,4)}, {vr(vI,4)}, 0")
a(f"{M32} {vr(140,16)}, {vr(176,4)}, {vr(vI+4,4)}, {vr(140,16)}")
dual_softmax(156, 180, 2)
a(f"{M32} {vr(156,16)}, {vr(180,4)}, {vr(vI,4)}, 0")
a(f"{M32} {vr(156,16)}, {vr(184,4)}, {vr(vI+4,4)}, {vr(156,16)}")
cvt8(172, 140)
a(f"{M32} {vr(52,16)}, {vr(172,4)}, {vr(188,4)}, 0")
a(f"{M32} {vr(52,16)}, {vr(176,4)}, {vr(192,4)}, {vr(52,16)}")
cvt8(180, 156)
a(f"{M32} {vr(68,16)}, {vr(180,4)}, {vr(196,4)}, 0")
a(f"{M32} {vr(68,16)}, {vr(184,4)}, {vr(200,4)}, {vr(68,16)}")
a(f"s_lshl_b32 s{t0}, s{sCg}, 15")
a(f"s_lshl_b32 s{t1}, s{sRt}, 12")
a(f"s_add_u32 s{t0}, s{t0}, s{t1}")
a(f"s_add_u32 s{t0}, s{t0}, 65536")
a(f"v_add_u32 v2, s{t0}, v{vL16}")
a(f"s_lshr_b32 s{t0}, s{sWave}, 1")
a(f"s_and_b32 s{t1}, s{sWave}, 1")
a(f"s_lshl_b32 s{t2}, s{t0}, 14")
a(f"s_lshl_b32 s{t3}, s{t1}, 11")
a(f"s_add_u32 s{t2}, s{t2}, s{t3}")
a(f"s_add_u32 s{t2}, s{t2}, 65536")
a(f"v_add_u32 v3, s{t2}, v{vL16}")
for u in range(2):
    for q in range(4):
        a(f"ds_write_b128 v2, {vr(52+16*u+4*q,4)} offset:{u*16384+q*1024}")
a("s_waitcnt lgkmcnt(0)")
a("s_barrier")
for rt in range(4):
    for q in range(2):
        a(f"ds_read_b128 {vr(116+8*rt+4*q,4)}, v3 offset:{rt*4096+q*1024}")
a(f"s_lshl_b32 s{t2}, s{sHq}, 2")
a(f"s_add_u32 s{t0}, s{t0}, s{t2}")
a(f"s_lshl_b32 s{t2}, s{t0}, 16")
a(f"s_add_u32 s{t2}, s{t2}, s{t3}")
a(f"s_lshl_b32 s{t3}, s{sRb}, 12")
a(f"s_add_u32 s{t2}, s{t2}, s{t3}")
a(f"s_add_u32 s{t2}, s{t2}, {KVP}")
a(f"s_lshl_b32 s{t0}, s{t0}, 5")
a(f"s_add_u32 s{t0}, s{t0}, s{t1}")
a(f"s_lshl_b32 s{t3}, s{sRb}, 1")
a(f"s_add_u32 s{t0}, s{t0}, s{t3}")
a(f"s_lshl_b32 s{t0}, s{t0}, 3")
a(f"s_add_u32 s{t0}, s{t0}, {FLGK}")
a("s_waitcnt lgkmcnt(0)")
for i in range(8): a(f"v_add_f32 v{116+i}, v{116+i}, v{124+i}")
for i in range(8): a(f"v_add_f32 v{132+i}, v{132+i}, v{140+i}")
for i in range(8): a(f"v_add_f32 v{116+i}, v{116+i}, v{132+i}")
a(f"buffer_store_dwordx4 {vr(116,4)}, v{vL16}, {sr(sWS,4)}, s{t2} offen sc1")
a(f"buffer_store_dwordx4 {vr(120,4)}, v{vL16}, {sr(sWS,4)}, s{t2} offen offset:1024 sc1")

a.label("L_p1done")
vK, vV, vS, vP, vO, vQ = 20, 52, 116, 148, 156, 188
vVld, vOw0, vOw1, vPoll, vPair = 196, 197, 198, 199, 248
sQoff, sDelta, sIt = sXoff, sWoff, sLdsX
PSLOT = 18432
post_flag(t0)
for i in range(64): a(f"v_mov_b32 v{vV+i}, 0x3f803f80")
a(f"s_lshr_b32 s{t0}, s{sH}, 1")
a(f"s_and_b32 s{t1}, s{t0}, 1")
a(f"s_lshl_b32 s{t2}, s{sHq}, 2")
a(f"s_add_u32 s{t2}, s{t2}, s{t1}")
a(f"s_lshl_b32 s{t2}, s{t2}, 9")
a(f"s_add_u32 s{t2}, s{t2}, {FLGA}")
a(f"s_lshl_b32 s{t3}, s{sWave}, 6")
a(f"s_add_u32 s{t3}, s{t3}, s{t2}")
a(f"s_lshl_b32 s{t0}, s{sC}, 6")
a(f"s_add_u32 s{t0}, s{t0}, s{t2}")
a(f"v_and_b32 v2, 7, v{vLane}")
a(f"v_lshlrev_b32 v2, 3, v2")
a(f"v_bfe_u32 v3, v{vLane}, 3, 1")
a(f"v_lshl_add_u32 v3, v3, 10, v2")
a(f"v_add_u32 v3, s{t3}, v3")
a(f"v_add_u32 v2, s{t0}, v2")
a(f"v_cmp_gt_u32 s[{t0}:{t1}], 16, v{vLane}")
a(f"v_cndmask_b32 v{vPoll}, v2, v3, s[{t0}:{t1}]")
a(f"v_lshrrev_b32 v2, 5, v{vLane}")
a(f"v_and_b32 v3, 15, v{vLane}")
a(f"v_lshlrev_b32 v3, 4, v3")
a(f"v_lshl_add_u32 v{vVld}, v2, 8, v3")
a(f"s_mul_i32 s{t0}, s{sWave}, 2304")
a(f"s_add_u32 s{t0}, s{t0}, {7*PSLOT}")
a(f"v_add_u32 v{vOw0}, s{t0}, v{vL16}")
a(f"v_lshlrev_b32 v2, 2, v{vLane}")
a(f"v_add_u32 v{vOw1}, s{t0}, v2")
a(f"s_mov_b32 s{sDelta}, {(-7*PSLOT) & 0xffffffff}")
a(f"s_lshl_b32 s{t1}, s{sH}, 16")
a(f"s_lshl_b32 s{t2}, s{sC}, 13")
a(f"s_add_u32 s{sQoff}, s{t1}, s{t2}")
a(f"s_add_u32 s{sQoff}, s{sQoff}, {QA}")
a(f"s_lshl_b32 s{t2}, s{sWave}, 13")
a(f"s_add_u32 s{t1}, s{t1}, s{t2}")
a(f"s_add_u32 s{t2}, s{t1}, {KA}")
a(f"s_add_u32 s{t3}, s{t1}, {VA}")
a("s_barrier")
stamp()
poll(vPoll, vPair)
stamp()
def ldK(kt):
    so = t2 if kt < 4 else t0
    a(f"buffer_load_dwordx4 {vr(vK+4*kt,4)}, v{vL16}, {sr(sWS,4)}, s{so} offen offset:{(kt&3)*1024} sc1")
def ldV(kt):
    so = t3 if kt < 4 else t1
    a("s_mov_b64 exec, s[4:5]")
    for m in range(2):
        a(f"buffer_load_dwordx4 {vr(vV+8*kt+4*m,4)}, v{vVld}, {sr(sWS,4)}, s{so} offen offset:{(kt&3)*1024+m*512} sc1")
    a("s_mov_b64 exec, -1")
a("s_mov_b32 s4, 0xffff")
a("s_mov_b32 s5, 0xffff")
a(f"s_add_u32 s{t0}, s{t2}, 4096")
a(f"s_add_u32 s{t1}, s{t3}, 4096")
a(f"buffer_load_dwordx4 {vr(vQ,4)}, v{vL16}, {sr(sWS,4)}, s{sQoff} offen sc1")
ldK(0)
for kt in range(8):
    ldV(kt)
    if kt < 7: ldK(kt+1)
a(f"s_mov_b32 s{sIt}, 4")
a("s_waitcnt vmcnt(23)")
a(f"{M32} {vr(vS,16)}, {vr(vK,4)}, {vr(vQ,4)}, 0")
a("s_nop 7")
a("s_nop 3")
a.label("L_attn")
for n in range(16):
    par, kt = n >> 3, n & 7
    S = vS + 16*(n & 1); Sn = vS + 16*((n+1) & 1)
    O = vO + 16*par
    pk = (kt - 1) & 7
    Op = O if kt > 0 else vO + 16*(par ^ 1)
    e = lambda i: a(f"v_exp_f32 v{S+i}, v{S+i}")
    c = lambda j: a(f"v_cvt_pk_bf16_f32 v{vP+j}, v{S+2*j}, v{S+2*j+1}")
    e(0); e(1)
    a(f"{M32} {vr(Op,16)}, {vr(vV+8*pk+4,4)}, {vr(vP+4,4)}, {vr(Op,16)}")
    if kt == 0:
        a(f"s_add_u32 s{sQoff}, s{sQoff}, 1024")
        a(f"buffer_load_dwordx4 {vr(vQ+4*(par^1),4)}, v{vL16}, {sr(sWS,4)}, s{sQoff} offen sc1")
    e(2); e(3); c(0); e(4); e(5); c(1); e(6); e(7); c(2)
    if kt == 7: a("s_waitcnt vmcnt(0)")
    elif par == 0: a(f"s_waitcnt vmcnt({3*(6-kt)+3})")
    Qn = vQ + 4*par if kt < 7 else vQ + 4*(par ^ 1)
    a(f"{M32} {vr(Sn,16)}, {vr(vK+4*((kt+1)&7),4)}, {vr(Qn,4)}, 0")
    e(8); c(3); e(9); e(10)
    a(f"{M32} {vr(O,16)}, {vr(vV+8*kt,4)}, {vr(vP,4)}, {'0' if kt == 0 else vr(O,16)}")
    e(11); c(4)
    if kt == 1:
        Oo = vO + 16*(par ^ 1)
        a(f"ds_write_b128 v{vOw0}, {vr(Oo,4)}")
        a(f"ds_write_b128 v{vOw0}, {vr(Oo+4,4)} offset:1024")
        a(f"ds_write_b32 v{vOw1}, v{Oo+8} offset:2048")
    e(12); e(13); c(5)
    if kt == 1:
        a(f"v_add_u32 v{vOw0}, s{sDelta}, v{vOw0}")
        a(f"v_add_u32 v{vOw1}, s{sDelta}, v{vOw1}")
        a(f"s_mov_b32 s{sDelta}, {PSLOT}")
    e(14); e(15); c(6); c(7)
a(f"s_sub_u32 s{sIt}, s{sIt}, 1")
a(f"s_cmp_lg_u32 s{sIt}, 0")
a("s_cbranch_scc1 L_attn")
a(f"{M32} {vr(vO+16,16)}, {vr(vV+8*7+4,4)}, {vr(vP+4,4)}, {vr(vO+16,16)}")
stamp()
a(f"s_lshl_b32 s{t0}, s{sH}, 8")
a(f"s_add_u32 s{t0}, s{t0}, {FLGK}")
a(f"v_lshlrev_b32 v2, 3, v{vLane}")
a(f"v_add_u32 v2, s{t0}, v2")
a(f"s_lshl_b32 s{sT}, s{sC}, 3")
a(f"s_add_u32 s{sT}, s{sT}, s{sWave}")
a(f"s_lshr_b32 s{t0}, s{sH}, 1")
a(f"s_lshl_b32 s{t0}, s{t0}, 6")
a(f"s_add_u32 s{t0}, s{t0}, s{sT}")
a(f"s_lshl_b32 s{t0}, s{t0}, 3")
a(f"s_add_u32 s{t0}, s{t0}, {FLGP}")
a(f"v_mov_b32 v3, s{t0}")
a(f"v_cmp_gt_u32 s[{t0}:{t1}], 32, v{vLane}")
a(f"v_cndmask_b32 v{vPoll}, v3, v2, s[{t0}:{t1}]")
a(f"ds_write_b128 v{vOw0}, {vr(vO+16,4)}")
a(f"ds_write_b128 v{vOw0}, {vr(vO+20,4)} offset:1024")
a(f"ds_write_b32 v{vOw1}, v{vO+24} offset:2048")
poll(vPoll, vPair)
vKV, vPQ = 200, 232
a(f"s_lshl_b32 s{t0}, s{sH}, 16")
a(f"s_lshr_b32 s{t1}, s{sWave}, 1")
a(f"s_lshl_b32 s{t1}, s{t1}, 10")
a(f"s_add_u32 s{t0}, s{t0}, s{t1}")
a(f"s_and_b32 s{t1}, s{sWave}, 1")
a(f"s_lshl_b32 s{t1}, s{t1}, 3")
a(f"s_add_u32 s{t0}, s{t0}, s{t1}")
a(f"s_add_u32 s{t0}, s{t0}, {KVP}")
for rb in range(16):
    a(f"buffer_load_dwordx2 {vr(vKV+2*rb,2)}, v{vL16}, {sr(sWS,4)}, s{t0} offen sc1")
    a(f"s_add_u32 s{t0}, s{t0}, 4096")
a(f"s_lshl_b32 s{t0}, s{sH}, 17")
a(f"s_lshl_b32 s{t1}, s{sT}, 11")
a(f"s_add_u32 s{t0}, s{t0}, s{t1}")
a(f"s_add_u32 s{t0}, s{t0}, {PHQ}")
a(f"buffer_load_dwordx4 {vr(vPQ,4)}, v{vL16}, {sr(sWS,4)}, s{t0} offen sc1")
a(f"buffer_load_dwordx4 {vr(vPQ+4,4)}, v{vL16}, {sr(sWS,4)}, s{t0} offen offset:1024 sc1")
KVX = 8*PSLOT
a(f"s_lshr_b32 s{t0}, s{sWave}, 2")
a(f"s_lshl_b32 s{t0}, s{t0}, 10")
a(f"s_and_b32 s{t1}, s{sWave}, 3")
a(f"s_lshl_b32 s{t1}, s{t1}, 2")
a(f"s_add_u32 s{t0}, s{t0}, s{t1}")
a(f"s_add_u32 s{t0}, s{t0}, {KVX}")
a(f"v_add_u32 v2, s{t0}, v{vL16}")
a("s_waitcnt vmcnt(2)")
for st in (16, 8, 4, 2):
    for i in range(st): a(f"v_add_f32 v{vKV+i}, v{vKV+i}, v{vKV+st+i}")
a(f"v_cvt_pk_bf16_f32 v{vKV}, v{vKV}, v{vKV+1}")
a(f"ds_write_b32 v2, v{vKV}")
a(f"s_mul_i32 s{t0}, s{sWave}, {PSLOT}")
a(f"v_add_u32 v2, s{t0}, v{vL16}")
a(f"v_lshlrev_b32 v3, 2, v{vLane}")
a(f"v_add_u32 v3, s{t0}, v3")
a(f"v_add_u32 v18, {KVX}, v{vL16}")
a("s_waitcnt lgkmcnt(0)")
a("s_barrier")
stamp()
vR = 20
a(f"ds_read_b128 {vr(vKV,4)}, v18")
a(f"ds_read_b128 {vr(vKV+4,4)}, v18 offset:1024")
for p in range(8):
    a(f"ds_read_b128 {vr(vR+12*p,4)}, v2 offset:{p*2304}")
    a(f"ds_read_b128 {vr(vR+12*p+4,4)}, v2 offset:{p*2304+1024}")
    a(f"ds_read_b32 v{vR+12*p+8}, v3 offset:{p*2304+2048}")
    if p == 3:
        a("s_waitcnt vmcnt(0) lgkmcnt(12)")
        a(f"{M32} {vr(vO,16)}, {vr(vKV,4)}, {vr(vPQ,4)}, 0")
        a(f"{M32} {vr(vO,16)}, {vr(vKV+4,4)}, {vr(vPQ+4,4)}, {vr(vO,16)}")
        a("s_waitcnt lgkmcnt(3)")
a("s_waitcnt lgkmcnt(0)")
a("s_barrier")
for st in (4, 2, 1):
    for p in range(st):
        for i in range(9): a(f"v_add_f32 v{vR+12*p+i}, v{vR+12*p+i}, v{vR+12*(p+st)+i}")
a(f"v_add_f32 v2, abs(v{vR}), abs(v{vR+1})")
a(f"v_add_f32 v3, abs(v{vR+2}), abs(v{vR+3})")
for i in range(4, 8): a(f"v_add_f32 v{2+(i&1)}, v{2+(i&1)}, abs(v{vR+i})")
a(f"v_add_f32 v2, v2, v3")
a(f"s_mov_b32 s{t2}, {f32(2.0**40)}")
a(f"s_mov_b32 s{t3}, {f32(2.0**120)}")
a(f"v_cmp_le_f32 vcc, 1.0, v{vR+8}")
a(f"v_cmp_ge_f32 s[{t0}:{t1}], s{t2}, v{vR+8}")
a(f"s_and_b64 vcc, vcc, s[{t0}:{t1}]")
a(f"v_cmp_ge_f32 s[{t0}:{t1}], s{t3}, v2")
a(f"s_and_b64 vcc, vcc, s[{t0}:{t1}]")
a(f"s_cmp_eq_u64 vcc, -1")
a("s_cbranch_scc1 L_slow" if FORCE_SLOW else "s_cbranch_scc0 L_slow")
a.label("L_norm")
a(f"v_rcp_f32 v{vR+8}, v{vR+8}")
a(f"v_add_f32 v{vO+8}, {f32(1e-6)}, v{vO+8}")
a(f"v_rcp_f32 v{vO+8}, v{vO+8}")
for i in range(8): a(f"v_mul_f32 v{vR+i}, v{vR+i}, v{vR+8}")
for i in range(8): a(f"v_mul_f32 v{vO+i}, v{vO+i}, v{vO+8}")
cvt8(vR+12, vR, 4)
cvt8(vR+16, vO, 4)
a(f"s_lshl_b32 s{t0}, s{sT}, 5")
a(f"s_add_u32 s{t0}, s{t0}, s{sH}")
a(f"s_lshl_b32 s{t1}, s{t0}, 10")
a(f"s_add_u32 s{t2}, s{t1}, {OA}")
a(f"s_add_u32 s{t3}, s{t1}, {OB}")
a(f"buffer_store_dwordx4 {vr(vR+12,4)}, v{vL16}, {sr(sWS,4)}, s{t2} offen sc1")
a(f"buffer_store_dwordx4 {vr(vR+16,4)}, v{vL16}, {sr(sWS,4)}, s{t3} offen sc1")
a(f"s_lshl_b32 s{t0}, s{t0}, 3")
a(f"s_add_u32 s{t0}, s{t0}, {FLGO}")
post_flag(t0)
stamp()

sR0, sN0, sKq = sXoff, sWoff, sLdsX
a(f"s_lshr_b32 s{t0}, s2, 3")
a(f"s_and_b32 s{t1}, s{t0}, 3")
a(f"s_lshl_b32 s{t1}, s{t1}, 6")
a(f"s_lshl_b32 s{sR0}, s{sHq}, 8")
a(f"s_add_u32 s{sR0}, s{sR0}, s{t1}")
a(f"s_lshr_b32 s{sN0}, s{t0}, 2")
a(f"s_lshl_b32 s{sN0}, s{sN0}, 7")
a(f"v_lshrrev_b32 v2, 3, v{vLane}")
a(f"v_and_b32 v3, 7, v{vLane}")
a(f"v_bfe_u32 v18, v{vLane}, 4, 1")
a(f"v_lshlrev_b32 v18, 2, v18")
a(f"v_xor_b32 v18, v18, v3")
a(f"v_lshlrev_b32 v18, 4, v18")
a(f"v_lshl_add_u32 v18, v2, 10, v18")
a(f"s_lshl_b32 s{t0}, s{sWave}, 13")
a(f"s_add_u32 s{t0}, s{t0}, s{sN0}")
a(f"s_lshl_b32 s{t1}, s{sWave}, 10")
for i in range(8):
    for b, sw in enumerate((sWOB, sWOA)):
        a(f"s_add_u32 m0, s{t1}, {(1-b)*65536 + i*8192}")
        a("s_nop 0")
        a(f"buffer_load_dwordx4 v18, {sr(sw,4)}, s{t0} offen lds")
    a(f"s_add_u32 s{t0}, s{t0}, 65536")
vGx, vGw = 20, 52
a(f"v_lshlrev_b32 v3, 4, v3")
a(f"v_lshl_add_u32 v19, v2, 10, v3")
a(f"s_lshl_b32 s{t0}, s{sWave}, 3")
a(f"s_add_u32 s{t0}, s{t0}, s{sR0}")
a(f"s_lshl_b32 s{t0}, s{t0}, 10")
for i in range(8):
    a(f"buffer_load_dwordx4 {vr(vGx+4*i,4)}, v19, {sr(sX,4)}, s{t0} offen offset:{i*128}")
    a(f"buffer_load_dwordx4 {vr(vGw+4*i,4)}, v3, {sr(sG,4)}, 0 offen offset:{i*128}")
a(f"s_and_b32 s{sRt}, s{sWave}, 1")
a(f"s_lshr_b32 s{sKq}, s{sWave}, 1")
a(f"s_lshr_b32 s{t0}, s{sR0}, 5")
a(f"s_add_u32 s{t0}, s{t0}, s{sRt}")
a(f"s_lshl_b32 s{t0}, s{t0}, 5")
a(f"s_lshl_b32 s{t1}, s{sKq}, 3")
a(f"s_add_u32 s{t0}, s{t0}, s{t1}")
a(f"s_lshl_b32 s{t1}, s{t0}, 3")
a(f"s_add_u32 s{t1}, s{t1}, {FLGO}")
a(f"v_lshrrev_b32 v3, 1, v3")
a(f"v_add_u32 v{vPoll}, s{t1}, v3")
a(f"s_lshl_b32 s{t0}, s{t0}, 10")
a(f"s_add_u32 s{t2}, s{t0}, {OA}")
a(f"s_add_u32 s{t3}, s{t0}, {OB}")
a("v_mov_b32 v84, 0")
a("v_mov_b32 v85, 0")
a("s_waitcnt vmcnt(0)")
for i in range(32):
    a(f"v_dot2_f32_bf16 v{84+(i&1)}, v{vGx+i}, v{vGw+i}, v{84+(i&1)}")
a("s_nop 2")
a("v_add_f32 v84, v84, v85")
a("v_add_f32_dpp v84, v84, v84 quad_perm:[1,0,3,2] row_mask:0xf bank_mask:0xf")
a("v_add_f32_dpp v84, v84, v84 quad_perm:[2,3,0,1] row_mask:0xf bank_mask:0xf")
a("v_add_f32_dpp v84, v84, v84 row_half_mirror row_mask:0xf bank_mask:0xf")
a(f"v_mul_f32 v84, s{sL2E}, v84")
a("v_exp_f32 v84, -v84")
a("v_add_f32 v84, 1.0, v84")
a("v_rcp_f32 v84, v84")
GL = 131072
a(f"s_lshl_b32 s{t0}, s{sWave}, 5")
a(f"s_add_u32 s{t0}, s{t0}, {GL}")
a(f"v_lshl_add_u32 v85, v2, 2, s{t0}")
a("ds_write_b32 v85, v84")
stamp()
poll(vPoll, vPair)
stamp()
vOf = 20
a(f"s_add_u32 s{t0}, s{t2}, 4096")
a(f"s_add_u32 s{t1}, s{t3}, 4096")
for i in range(8):
    a(f"buffer_load_dwordx4 {vr(vOf+32+4*i,4)}, v{vL16}, {sr(sWS,4)}, s{t3 if i < 4 else t1} offen offset:{(i&3)*1024} sc1")
for i in range(8):
    a(f"buffer_load_dwordx4 {vr(vOf+4*i,4)}, v{vL16}, {sr(sWS,4)}, s{t2 if i < 4 else t0} offen offset:{(i&3)*1024} sc1")
a(f"v_lshrrev_b32 v3, 5, v{vLane}")
a(f"v_bfe_u32 v18, v{vLane}, 2, 2")
a(f"v_lshl_add_u32 v18, v3, 2, v18")
a(f"v_lshlrev_b32 v18, 7, v18")
a(f"v_bfe_u32 v19, v{vLane}, 3, 1")
a(f"v_lshl_add_u32 v18, v19, 6, v18")
a(f"v_bfe_u32 v19, v{vLane}, 4, 1")
a(f"v_lshl_add_u32 v18, v19, 5, v18")
a(f"v_and_b32 v19, 3, v{vLane}")
a(f"v_lshl_add_u32 v18, v19, 3, v18")
a(f"s_lshl_b32 s{t0}, s{sKq}, 14")
a(f"v_add_u32 v86, s{t0}, v18")
a(f"v_xor_b32 v87, 64, v86")
a(f"v_add_u32 v88, 65536, v86")
a(f"v_add_u32 v89, 65536, v87")
a(f"v_and_b32 v19, 31, v{vLane}")
a(f"s_lshl_b32 s{t0}, s{sRt}, 7")
a(f"s_add_u32 s{t0}, s{t0}, {GL}")
a(f"v_lshl_add_u32 v90, v19, 2, s{t0}")
a("s_waitcnt lgkmcnt(0)")
a("s_barrier")
a("ds_read_b32 v90, v90")
vW3 = 92
vA3 = 108
seq = [(br, i) for br in (1, 0) for i in range(8)]
def rd3(n):
    br, i = seq[n]
    for ct in range(2):
        for sec in range(2):
            a(f"ds_read_b64_tr_b16 {vr(vW3+8*(n&1)+4*ct+2*sec,2)}, v{86+2*br+ct} offset:{i*2048+sec*1024}")
rd3(0)
for n in range(16):
    br, i = seq[n]
    if n < 15:
        rd3(n+1)
        a(f"s_waitcnt vmcnt({15-n}) lgkmcnt(4)")
    else:
        a("s_waitcnt vmcnt(0) lgkmcnt(0)")
    for ct in range(2):
        d = vr(vA3+32*br+16*ct, 16)
        a(f"{M32} {d}, {vr(vW3+8*(n&1)+4*ct,4)}, {vr(vOf+32*br+4*i,4)}, {'0' if i == 0 else d}")
a("s_barrier")
stamp()
a(f"s_or_b32 s{t0}, s2, s{sWave}")
a(f"s_cmp_lg_u32 s{t0}, 0")
a("s_cbranch_scc1 L_noepoch")
a("s_mov_b64 exec, 1")
a(f"buffer_store_dwordx2 {vr(vTAG,2)}, v{vZERO}, {sr(sWS,4)}, 0 offen sc1")
a("s_mov_b64 exec, -1")
a.label("L_noepoch")
a(f"s_mul_i32 s{t0}, s{sKq}, 17408")
a(f"s_mul_i32 s{t1}, s{sRt}, {32*272}")
a(f"s_add_u32 s{t0}, s{t0}, s{t1}")
a(f"v_mul_u32_u24 v18, 272, v19")
a(f"v_lshl_add_u32 v18, v3, 4, v18")
a(f"v_add_u32 v18, s{t0}, v18")
a(f"s_mul_i32 s{t0}, s{sWave}, {8*272}")
a(f"v_mul_u32_u24 v19, 272, v2")
a(f"v_and_b32 v3, 7, v{vLane}")
a(f"v_lshl_add_u32 v19, v3, 5, v19")
a(f"v_add_u32 v19, s{t0}, v19")
for i in range(32): a(f"v_sub_f32 v{vA3+i}, v{vA3+i}, v{vA3+32+i}")
for i in range(32): a(f"v_fma_f32 v{vA3+i}, v{vA3+i}, v90, v{vA3+32+i}")
for ct in range(2):
    for j in range(4):
        a(f"ds_write_b128 v18, {vr(vA3+16*ct+4*j,4)} offset:{ct*128+j*32}")
a(f"v_lshlrev_b32 v3, 4, v3")
a(f"v_lshl_add_u32 v3, v2, 10, v3")
a(f"s_lshl_b32 s{t0}, s{sWave}, 3")
a(f"s_add_u32 s{t0}, s{t0}, s{sR0}")
a(f"s_lshl_b32 s{t0}, s{t0}, 10")
a(f"s_add_u32 s{t0}, s{t0}, s{sN0}")
a("s_waitcnt lgkmcnt(0)")
a("s_barrier")
for k in range(4):
    a(f"ds_read_b128 {vr(20+8*k,4)}, v19 offset:{k*17408}")
    a(f"ds_read_b128 {vr(24+8*k,4)}, v19 offset:{k*17408+16}")
a("s_waitcnt lgkmcnt(0)")
for i in range(16): a(f"v_add_f32 v{20+i}, v{20+i}, v{36+i}")
for i in range(8): a(f"v_add_f32 v{20+i}, v{20+i}, v{28+i}")
cvt8(28, 20, 4)
a(f"buffer_store_dwordx4 {vr(28,4)}, v3, {sr(sOUT,4)}, s{t0} offen")
if DEBUG_TS:
    a("s_waitcnt vmcnt(0)")
    stamp()
    a(f"s_lshl_b32 s{t0}, s2, 3")
    a(f"s_add_u32 s{t0}, s{t0}, s{sWave}")
    a(f"s_lshl_b32 s{t0}, s{t0}, 6")
    a(f"s_add_u32 s{t0}, s{t0}, {TS}")
    for i in range(12): a(f"v_mov_b32 v{20+i}, s{sTS+i}")
    a("s_mov_b64 exec, 1")
    for i in range(3):
        a(f"buffer_store_dwordx4 {vr(20+4*i,4)}, v{vZERO}, {sr(sWS,4)}, s{t0} offen offset:{16*i}")
a.label("L_end")
a("s_endpgm")

a.label("L_slow")
a(f"s_lshl_b32 s{t0}, s{sH}, 16")
a(f"s_lshl_b32 s{t1}, s{sT}, 10")
a(f"s_add_u32 s{t1}, s{t1}, s{t0}")
a(f"s_add_u32 s{t1}, s{t1}, {QA}")
a(f"buffer_load_dwordx4 {vr(188,4)}, v{vL16}, {sr(sWS,4)}, s{t1} offen sc1")
a(f"s_add_u32 s{t1}, s{t0}, {KA}")
a(f"s_mov_b32 s{t2}, 64")
a("v_mov_b32 v120, 0xff7fffff")
a.label("L_slow1")
a(f"buffer_load_dwordx4 {vr(52,4)}, v{vL16}, {sr(sWS,4)}, s{t1} offen sc1")
a("s_waitcnt vmcnt(0)")
a(f"{M32} {vr(64,16)}, {vr(52,4)}, {vr(188,4)}, 0")
for i in range(8): a(f"v_max3_f32 v120, v120, v{64+2*i}, v{65+2*i}")
a(f"s_add_u32 s{t1}, s{t1}, 1024")
a(f"s_sub_u32 s{t2}, s{t2}, 1")
a(f"s_cmp_lg_u32 s{t2}, 0")
a("s_cbranch_scc1 L_slow1")
a("v_mov_b32 v121, v120")
a("v_permlane32_swap_b32 v120, v121")
a("v_max_f32 v120, v120, v121")
for i in range(16): a(f"v_sub_f32 v{104+i}, 0, v120")
for i in range(16): a(f"v_mov_b32 v{88+i}, 0")
for i in range(8): a(f"v_mov_b32 v{56+i}, 0x3f803f80")
a(f"s_add_u32 s{t1}, s{t0}, {KA}")
a(f"s_add_u32 s{t3}, s{t0}, {VA}")
a(f"s_mov_b32 s{t2}, 64")
a.label("L_slow2")
a(f"buffer_load_dwordx4 {vr(52,4)}, v{vL16}, {sr(sWS,4)}, s{t1} offen sc1")
a("s_mov_b64 exec, s[4:5]")
a(f"buffer_load_dwordx4 {vr(56,4)}, v{vVld}, {sr(sWS,4)}, s{t3} offen sc1")
a(f"buffer_load_dwordx4 {vr(60,4)}, v{vVld}, {sr(sWS,4)}, s{t3} offen offset:512 sc1")
a("s_mov_b64 exec, -1")
a("s_waitcnt vmcnt(0)")
a(f"{M32} {vr(64,16)}, {vr(52,4)}, {vr(188,4)}, {vr(104,16)}")
for i in range(16): a(f"v_exp_f32 v{64+i}, v{64+i}")
cvt8(80, 64)
a(f"{M32} {vr(88,16)}, {vr(56,4)}, {vr(80,4)}, {vr(88,16)}")
a(f"{M32} {vr(88,16)}, {vr(60,4)}, {vr(84,4)}, {vr(88,16)}")
a(f"s_add_u32 s{t1}, s{t1}, 1024")
a(f"s_add_u32 s{t3}, s{t3}, 1024")
a(f"s_sub_u32 s{t2}, s{t2}, 1")
a("s_nop 7")
a(f"s_cmp_lg_u32 s{t2}, 0")
a("s_cbranch_scc1 L_slow2")
for i in range(9): a(f"v_mov_b32 v{vR+i}, v{88+i}")
a("s_branch L_norm")

body, nn = a.finish(verbose="-v" in sys.argv)
hdr = open("cdna_kernels/" + NAME + ".s.ref").read().split("; Override launch")[0]
text = hdr + f"""; @launch grid=(256,1,1) block=(512,1,1) lds=163840
.amdgcn_target "amdgcn-amd-amdhsa--gfx950"
.text
.globl {NAME}_kernel
.p2align 8
.type {NAME}_kernel,@function
{NAME}_kernel:
{body}
.section .rodata,"a"
.p2align 6
.amdhsa_kernel {NAME}_kernel
  .amdhsa_next_free_vgpr 256
  .amdhsa_next_free_sgpr 102
  .amdhsa_accum_offset 256
  .amdhsa_group_segment_fixed_size 0
  .amdhsa_kernarg_size 88
  .amdhsa_user_sgpr_count 2
  .amdhsa_user_sgpr_kernarg_segment_ptr 1
  .amdhsa_system_sgpr_workgroup_id_x 1
.end_amdhsa_kernel
"""
out = [x for x in sys.argv[1:] if not x.startswith("-")]
path = out[0] if out else "cdna_kernels/" + NAME + ".s"
open(path, "w").write(text)
print("wrote", path, "nops inserted:", nn)
```

```python
import sys, struct
from asmlib import *

NAME = "gated_mix__mha_block__linear_kernel_hedgehog__prompt"
def opt(name, default):
    for x in sys.argv:
        if x.startswith(f"--{name}="): return int(x.split("=")[1])
    return default
DEBUG_TS = "--ts" in sys.argv
P1TS = "--p1" in sys.argv
FORCE_SLOW = "--force-slow" in sys.argv
LEAD = opt("lead", 3)
CODEPF = opt("codepf", 1)
MAP84 = opt("map84", 1)

EPOCH = 0
FLGA = 0x1000; FLGP = 0x5000; FLGK = 0x7000; FLGO = 0x9000; FLGOB = 0xD000
QA = 0x100000; KA = 0x300000; VA = 0x500000; PHQ = 0x700000; KVP = 0xB00000
OA = 0xD00000; OB = 0xF00000; TS = 0x1200000
WS_SIZE = 0x1400000
PSLOT = 9216; WO = 73728; KVX = 139264; GL = KVX + 2048; PARK = GL + 256
RED = 0

def f32(x): return "0x%08x" % struct.unpack("<I", struct.pack("<f", x))[0]
LOG2E = 1.4426950408889634
M32 = "v_mfma_f32_32x32x16_bf16"

sVM = 4
sRET = 6
sSUB = 8
sL2E2 = 10
sQS = 12
sTAG = 26
sX, sWA, sWB, sWS, sPHI, sOUT, sWOA, sWOB, sG = 28, 32, 36, 44, 48, 52, 56, 60, 64
sWave, sHq, sType, sRb, sRt, sCg, sH, sC, sT, sHa = 68, 69, 70, 71, 72, 73, 74, 75, 76, 77
t0, t1, t2, t3, t4, t5 = 78, 79, 80, 81, 82, 83
sXoff, sWoff, sLdsX, sLdsW = 84, 85, 86, 87
sCnt, sHq2 = 88, 89
sTe, sN0, sW4, sTq = 14, 15, 16, 17
sTS = 90
sL2E = sL2E2

a = Asm()
def stamp(i, p1=False):
    if not DEBUG_TS or (p1 != P1TS and i not in (0, 11)): return
    a(f"{'s_memtime' if '--cyc' in sys.argv else 's_memrealtime'} s[{t4}:{t5}]")
    a("s_waitcnt lgkmcnt(0)")
    a(f"s_mov_b32 s{sTS+i}, s{t4}")

uid = [0]
def poll(vaddr, vpair):
    n = uid[0]; uid[0] += 1
    a(f"s_mov_b32 s{sCnt}, 0x100000")
    a.label(f"L_poll{n}")
    a(f"buffer_load_dwordx2 {vr(vpair,2)}, v{vaddr}, {sr(sWS,4)}, 0 offen sc1")
    a("s_waitcnt vmcnt(0)")
    a(f"v_cmp_ne_u64 vcc, {sr(sTAG,2)}, {vr(vpair,2)}")
    a(f"s_cmp_eq_u64 vcc, 0")
    a(f"s_cbranch_scc1 L_polld{n}")
    a(f"s_sub_u32 s{sCnt}, s{sCnt}, 1")
    a(f"s_cmp_eq_u32 s{sCnt}, 0")
    a(f"s_cbranch_scc1 L_polld{n}")
    a("s_sleep 1")
    a(f"s_branch L_poll{n}")
    a.label(f"L_polld{n}")

vTAG = 250; vZERO = 252; vPair = 248; vPoll = 253
def post_flag(soff, extra=None):
    a("s_waitcnt vmcnt(0)")
    a("s_mov_b64 exec, 1")
    a(f"buffer_store_dwordx2 {vr(vTAG,2)}, v{vZERO}, {sr(sWS,4)}, s{soff} offen sc1")
    if extra is not None:
        a(f"buffer_store_dwordx2 {vr(vTAG,2)}, v{vZERO}, {sr(sWS,4)}, s{soff} offen offset:{extra} sc1")
    a("s_mov_b64 exec, -1")

def if_group(isY, fn):
    n = uid[0]; uid[0] += 1
    a(f"s_cmp_ge_u32 s{sWave}, 4")
    a(f"s_cbranch_scc{0 if isY else 1} L_g{n}")
    fn()
    a.label(f"L_g{n}")

def cvt8(dst, src, n=8):
    for i in range(n):
        a(f"v_cvt_pk_bf16_f32 v{dst+i}, v{src+2*i}, v{src+2*i+1}")
def pk(op, d, x, y, z=None, mods=""):
    s = f"v_pk_{op}_f32 {vr(d,2)}, {x}, {y}"
    if z is not None: s += f", {z}"
    a(s + (" " + mods if mods else ""))

vLane = 1; vL16 = 17
vPhiRaw = 4
vXa0, vXa1, vWa = 8, 9, 10
vXr = 11; vWr = 15
vXf = 20; vWf = 28; vAcc = 52
vI = 100; vPhi = 108

a("s_cmp_ge_u32 s2, 256")
a("s_cbranch_scc1 L_end")
for (d, off) in ((sX, 0), (sWA, 8), (sWB, 32), (sWS, 80), (sPHI, 40), (sWOA, 16), (sWOB, 48), (sG, 56), (sOUT, 64)):
    a(f"s_load_dwordx2 {sr(d,2)}, s[0:1], {off}")
if CODEPF:
    a(f"s_getpc_b64 s[{t0}:{t1}]")
    a.label("L_pc")
    a("v_lshlrev_b32 v2, 6, v0")
    a("v_min_u32 v2, L_codeend-L_pc-4, v2")
    a(f"global_load_dword v3, v2, s[{t0}:{t1}]")
a("v_lshrrev_b32 v2, 6, v0")
a(f"v_and_b32 v{vLane}, 63, v0")
a(f"v_readfirstlane_b32 s{sWave}, v2")
a(f"s_and_b32 s{sHq2}, s2, 7")
a(f"s_lshr_b32 s{t0}, s2, 3")
if MAP84:
    a(f"s_and_b32 s{sType}, s{t0}, 1")
    a(f"s_bfe_u32 s{t1}, s{t0}, 0x10001")
    a(f"s_and_b32 s{sHq}, s2, 6")
    a(f"s_add_u32 s{sHq}, s{sHq}, s{t1}")
    a(f"s_and_b32 s{t1}, s2, 1")
    a(f"s_lshl_b32 s{t1}, s{t1}, 3")
    a(f"s_lshr_b32 s{sRb}, s{t0}, 2")
    a(f"s_add_u32 s{sRb}, s{sRb}, s{t1}")
else:
    a(f"s_mov_b32 s{sHq}, s{sHq2}")
    a(f"s_and_b32 s{sType}, s{t0}, 1")
    a(f"s_lshr_b32 s{sRb}, s{t0}, 1")
a(f"v_lshrrev_b32 v2, 3, v{vLane}")
a(f"v_and_b32 v19, 7, v{vLane}")
a(f"v_bfe_u32 v18, v{vLane}, 4, 2")
a(f"v_xor_b32 v18, v18, v19")
a(f"v_lshlrev_b32 v18, 4, v18")
a(f"v_lshl_add_u32 v{vXa0}, v2, 10, v18")
a(f"v_xor_b32 v{vXa1}, 64, v{vXa0}")
a(f"v_add_u32 v{vXa1}, 7168, v{vXa1}")
a(f"v_bfe_u32 v18, v{vLane}, 4, 1")
a(f"v_lshlrev_b32 v18, 2, v18")
a(f"v_xor_b32 v18, v18, v19")
a(f"v_lshlrev_b32 v18, 4, v18")
a(f"v_mul_u32_u24 v{vWa}, 3072, v2")
a(f"v_add_u32 v{vWa}, v{vWa}, v18")
a(f"s_lshl_b32 s{sXoff}, s{sRb}, 17")
a(f"s_lshl_b32 s{t1}, s{sWave}, 14")
a(f"s_add_u32 s{sXoff}, s{sXoff}, s{t1}")
a(f"s_mul_i32 s{sWoff}, s{sWave}, {8*3072}")
a(f"s_lshl_b32 s{t1}, s{sHq}, 7")
a(f"s_add_u32 s{sWoff}, s{sWoff}, s{t1}")
a(f"s_lshl_b32 s{sLdsX}, s{sWave}, 11")
a(f"s_lshl_b32 s{sLdsW}, s{sWave}, 10")
a(f"s_add_u32 s{sLdsW}, s{sLdsW}, 65536")
for (d, n) in ((sX, 2048*512*2), (sWA, 512*1536*2), (sWB, 512*1536*2)):
    a(f"s_mov_b32 s{d+2}, {n}")
    a(f"s_mov_b32 s{d+3}, 0x20000")
a(f"s_cmp_eq_u32 s{sType}, 0")
a("s_waitcnt lgkmcnt(0)")
a("s_cbranch_scc0 L_type2")

def dma_ops(slot, segs):
    g = []
    g.append([f"s_add_u32 m0, s{sLdsX}, {slot*16384}", "s_nop 0",
              f"buffer_load_dwordx4 v{vXa0}, {sr(sX,4)}, s{sXoff} offen lds"])
    g.append([f"buffer_load_dwordx4 v{vXa1}, {sr(sX,4)}, s{sXoff} offen offset:1024 lds",
              f"s_add_u32 s{sXoff}, s{sXoff}, 128"])
    for seg, (sw, col) in enumerate(segs):
        x = [f"s_add_u32 m0, s{sLdsW}, {slot*24576 + seg*8192 - col}", "s_nop 0",
             f"buffer_load_dwordx4 v{vWa}, {sr(sw,4)}, s{sWoff} offen offset:{col} lds"]
        if seg == 2: x.append(f"s_add_u32 s{sWoff}, s{sWoff}, {64*3072}")
        g.append(x)
    return g
def dma_stage(slot, segs):
    for g in dma_ops(slot, segs):
        for x in g: a(x)

def setup1():
    a(f"s_load_dwordx2 {sr(sTAG,2)}, {sr(sWS,2)}, {EPOCH}")
    for (d, n) in ((sWS, WS_SIZE), (sPHI, 32*512), (sOUT, 2048*512*2), (sWOA, 512*512*2), (sWOB, 512*512*2), (sG, 1024)):
        a(f"s_mov_b32 s{d+2}, {n}")
        a(f"s_mov_b32 s{d+3}, 0x20000")
    a(f"s_lshr_b32 s{t0}, s2, 3")
    a(f"s_and_b32 s{t1}, s{t0}, 3")
    a(f"s_lshl_b32 s{sH}, s{sHq2}, 2")
    a(f"s_add_u32 s{sH}, s{sH}, s{t1}")
    a(f"s_lshr_b32 s{sC}, s{t0}, 2")
    a(f"s_lshl_b32 s{sTe}, s{sHq2}, 3")
    a(f"s_add_u32 s{sTe}, s{sTe}, s{t1}")
    a(f"s_lshl_b32 s{sN0}, s{sC}, 7")
    a(f"s_and_b32 s{sRt}, s{sWave}, 3")
    a(f"s_mov_b32 s{sW4}, s{sRt}")
    a(f"s_lshr_b32 s{sCg}, s{sWave}, 2")
    a(f"s_lshl_b32 s{sT}, s{sRb}, 2")
    a(f"s_add_u32 s{sT}, s{sT}, s{sRt}")
    a(f"s_lshl_b32 s{sHa}, s{sHq}, 2")
    a(f"s_lshl_b32 s{t1}, s{sCg}, 1")
    a(f"s_add_u32 s{sHa}, s{sHa}, s{t1}")
    a(f"v_lshlrev_b32 v{vL16}, 4, v{vLane}")
    a(f"s_lshl_b32 s{t0}, s{sHa}, 9")
    a(f"buffer_load_dwordx4 {vr(vPhiRaw,4)}, v{vL16}, {sr(sPHI,4)}, s{t0} offen")
    a(f"v_and_b32 v2, 31, v{vLane}")
    a(f"v_lshrrev_b32 v116, 5, v{vLane}")
    a(f"v_bfe_u32 v18, v{vLane}, 1, 3")
    a(f"v_xor_b32 v18, v18, v116")
    a(f"v_lshlrev_b32 v18, 4, v18")
    a(f"s_lshl_b32 s{t0}, s{sRt}, 12")
    a(f"v_lshl_add_u32 v18, v2, 7, v18")
    a(f"v_add_u32 v{vXr}, s{t0}, v18")
    for kk in (1, 2, 3): a(f"v_xor_b32 v{vXr+kk}, {kk*32}, v{vXr}")
    a(f"v_bfe_u32 v18, v{vLane}, 2, 2")
    a(f"v_lshl_add_u32 v18, v116, 3, v18")
    a(f"v_lshlrev_b32 v18, 7, v18")
    a(f"v_bfe_u32 v19, v{vLane}, 3, 1")
    a(f"v_xor_b32 v19, s{sCg}, v19")
    a(f"v_lshl_add_u32 v18, v19, 6, v18")
    a(f"v_bfe_u32 v19, v{vLane}, 4, 1")
    a(f"v_lshl_add_u32 v18, v19, 5, v18")
    a(f"v_and_b32 v19, 3, v{vLane}")
    a(f"v_lshl_add_u32 v18, v19, 3, v18")
    a(f"v_add_u32 v{vWr}, 65536, v18")
    a(f"v_add_u32 v{vWr+1}, {65536+49152}, v18")

def setup2(ident):
    if ident:
        a(f"v_lshlrev_b32 v18, 2, v116")
        a(f"v_sub_u32 v18, v2, v18")
        a(f"v_mov_b32 v19, 0x3f80")
        a(f"v_mov_b32 v117, 0x3f800000")
        for r in range(8):
            tt = 8*((r & 3) >> 1) + 2*(r & 1) + 16*(r >> 2)
            a(f"v_cmp_eq_u32 s[{t0}:{t1}], {tt}, v18")
            a(f"v_cmp_eq_u32 s[{t2}:{t3}], {tt+1}, v18")
            a(f"v_cndmask_b32 v{vI+r}, 0, v19, s[{t0}:{t1}]")
            a(f"v_cndmask_b32 v{vI+r}, v{vI+r}, v117, s[{t2}:{t3}]")
    a(f"v_mov_b32 v{vZERO}, 0")
    a(f"s_mov_b32 s{sL2E2}, {f32(LOG2E)}")
    a(f"s_mov_b32 s{sL2E2+1}, {f32(LOG2E)}")
    a(f"s_mov_b32 s{sQS}, {f32(0.25*LOG2E)}")
    a(f"s_mov_b32 s{sQS+1}, {f32(0.25*LOG2E)}")
    a(f"s_mov_b32 s{sVM}, 0xffff")
    a(f"s_mov_b32 s{sVM+1}, 0xffff")
    a(f"s_lshl_b32 s{t0}, s{sWave}, 10")
    a(f"v_bfe_u32 v18, v{vLane}, 2, 2")
    a(f"v_lshl_add_u32 v18, v116, 2, v18")
    a(f"v_lshlrev_b32 v18, 5, v18")
    a(f"v_and_b32 v19, 3, v{vLane}")
    a(f"v_lshl_add_u32 v18, v19, 3, v18")
    a(f"v_add_u32 v18, s{t0}, v18")
    a(f"v_bfe_u32 v19, v{vLane}, 4, 1")
    a(f"v_mul_u32_u24 v19, 0x8000, v19")
    a(f"v_lshl_or_b32 v19, v19, 16, v19")
    a(f"v_add_u32 v117, s{t0}, v{vL16}")
    a("s_waitcnt lgkmcnt(0)")
    a(f"s_add_u32 s{sTAG}, s{sTAG}, 0x9e3779b9")
    a(f"s_addc_u32 s{sTAG+1}, s{sTAG+1}, 0x7f4a7c15")
    a(f"v_mov_b32 v{vTAG}, s{sTAG}")
    a(f"v_mov_b32 v{vTAG+1}, s{sTAG+1}")

def rd_x(i):
    s, kk = i >> 2, i & 3
    a(f"ds_read_b128 {vr(vXf+4*(i&1),4)}, v{vXr+kk} offset:{(s&3)*16384}")
def rd_w(i, seg):
    s, kk = i >> 2, i & 3
    slot = s & 3
    for sec in range(2):
        off = (slot & 1)*24576 + seg*8192 + kk*2048 + sec*512
        a(f"ds_read_b64_tr_b16 {vr(vWf+12*(i&1)+4*seg+2*sec,2)}, v{vWr+(slot>>1)} offset:{off}")

def gemm(vtype, segs, ident):
    stamp(0)
    dma_stage(0, segs)
    setup1()
    dma_stage(1, segs)
    setup2(ident)
    if LEAD == 3: dma_stage(2, segs)
    stamp(1, True)
    a(f"s_waitcnt vmcnt({5*(LEAD-1)+1})")
    a("s_barrier")
    stamp(2, True)
    rd_x(0)
    for seg in range(3): rd_w(0, seg)
    pend = dma_ops(LEAD & 3, segs)
    issued = LEAD
    for i in range(32):
        s, kk = i >> 2, i & 3
        b = i & 1
        last = i == 31
        if kk == 3 and s < 7:
            assert not pend
            n = 5*(min(s+LEAD, 7) - (s+1))
            a(f"s_waitcnt vmcnt({n})" + (" lgkmcnt(0)" if LEAD == 3 else ""))
            a("s_barrier")
            stamp(3+s, True)
            if s+1+LEAD <= 7: pend = dma_ops((s+1+LEAD) & 3, segs)
        for seg in range(3):
            if last: a(f"s_waitcnt lgkmcnt({4-2*seg})")
            else: a(f"s_waitcnt lgkmcnt({4 if seg == 0 else 5})")
            x = vr(vXf+4*b, 4); w = vr(vWf+12*b+4*seg, 4); d = vr(vAcc+16*seg, 16)
            c = "0" if i == 0 else d
            if vtype[seg]: a(f"{M32} {d}, {x}, {w}, {c}")
            else: a(f"{M32} {d}, {w}, {x}, {c}")
            if not last:
                if seg == 0: rd_x(i+1)
                rd_w(i+1, seg)
            if seg >= 1 and pend:
                for x in pend.pop(0): a(x)
    stamp(10, True)
    stamp(1)

def wphi_stage():
    a(f"ds_write_b128 v117, {vr(vPhiRaw,4)}")
def wphi_read():
    a("s_waitcnt lgkmcnt(0)")
    for u in range(2):
        for sec in range(2):
            a(f"ds_read_b64_tr_b16 {vr(vPhi+4*u+2*sec,2)}, v18 offset:{u*512+sec*256}")
def wphi_sign():
    a("s_waitcnt lgkmcnt(0)")
    for i in range(8): a(f"v_xor_b32 v{vPhi+i}, v19, v{vPhi+i}")

def dual_softmax(D, PH, tmp):
    mp, mn = tmp, tmp+1
    H = ((mp, 0), (mn, 8))
    for (m, o) in H: a(f"v_max3_f32 v{m}, v{D+o}, v{D+o+1}, v{D+o+2}")
    for (m, o) in H: a(f"v_max3_f32 v{m}, v{m}, v{D+o+3}, v{D+o+4}")
    for (m, o) in H: a(f"v_max3_f32 v{m}, v{m}, v{D+o+5}, v{D+o+6}")
    for (m, o) in H: a(f"v_max_f32 v{m}, v{m}, v{D+o+7}")
    a(f"v_permlane32_swap_b32 v{mp}, v{mn}")
    a(f"v_max_f32 v{mp}, v{mp}, v{mn}")
    a(f"v_mul_f32 v{mp}, s{sL2E}, v{mp}")
    a(f"v_mov_b32 v{mn}, v{mp}")
    a(f"v_permlane32_swap_b32 v{mp}, v{mn}")
    for i in range(8):
        hi = 1 if i >= 4 else 0
        pk("fma", D+2*i, vr(D+2*i,2), sr(sL2E2,2), vr(mp,2), f"op_sel:[0,0,{hi}] op_sel_hi:[1,1,{hi}] neg_lo:[0,0,1] neg_hi:[0,0,1]")
    for i in range(16): a(f"v_exp_f32 v{D+i}, v{D+i}")
    s1, s2 = tmp+2, tmp+4
    for (s, o) in ((s1, 0), (s2, 8)): pk("add", s, vr(D+o,2), vr(D+o+2,2))
    for (s, o) in ((s1, 0), (s2, 8)): pk("add", s, vr(s,2), vr(D+o+4,2))
    for (s, o) in ((s1, 0), (s2, 8)): pk("add", s, vr(s,2), vr(D+o+6,2))
    a(f"v_add_f32 v{mp}, v{s1}, v{s1+1}")
    a(f"v_add_f32 v{mn}, v{s2}, v{s2+1}")
    a(f"v_permlane32_swap_b32 v{mp}, v{mn}")
    a(f"v_add_f32 v{mp}, v{mp}, v{mn}")
    a(f"v_rcp_f32 v{mp}, v{mp}")
    a(f"v_mov_b32 v{mn}, v{mp}")
    a(f"v_permlane32_swap_b32 v{mp}, v{mn}")
    for i in range(8):
        hi = 1 if i >= 4 else 0
        pk("mul", D+2*i, vr(D+2*i,2), vr(mp,2), None, f"op_sel:[0,{hi}] op_sel_hi:[1,{hi}]")
    cvt8(PH, D)

def flagA_off(dst):
    a(f"s_lshl_b32 s{dst}, s{sHq}, 1")
    a(f"s_add_u32 s{dst}, s{dst}, s{sType}")
    a(f"s_lshl_b32 s{dst}, s{dst}, 1")
    a(f"s_add_u32 s{dst}, s{dst}, s{sCg}")
    a(f"s_lshl_b32 s{dst}, s{dst}, 6")
    a(f"s_add_u32 s{dst}, s{dst}, s{sT}")
    a(f"s_lshl_b32 s{dst}, s{dst}, 3")
    a(f"s_add_u32 s{dst}, s{dst}, {FLGA}")

vTmp = 8
gemm([False, False, False], [(sWA, 0), (sWA, 1024), (sWB, 0)], False)
a("s_setprio 3")
wphi_stage()
a(f"s_lshl_b32 s{t1}, s{sHa}, 16")
a(f"s_lshl_b32 s{t2}, s{sT}, 10")
a(f"s_add_u32 s{t1}, s{t1}, s{t2}")
a(f"s_add_u32 s{t2}, s{t1}, {QA}")
a(f"s_add_u32 s{t3}, s{t1}, {QA+65536}")
flagA_off(t0)
for i in range(8): pk("mul", vAcc+2*i, vr(vAcc+2*i,2), sr(sQS,2))
cvt8(124, vAcc)
a(f"buffer_store_dwordx4 {vr(124,4)}, v{vL16}, {sr(sWS,4)}, s{t2} offen sc1")
a(f"buffer_store_dwordx4 {vr(128,4)}, v{vL16}, {sr(sWS,4)}, s{t3} offen sc1")
wphi_read()
a(f"s_add_u32 s{t2}, s{t1}, {KA}")
a(f"s_add_u32 s{t3}, s{t1}, {KA+65536}")
cvt8(116, vAcc+16)
a(f"buffer_store_dwordx4 {vr(116,4)}, v{vL16}, {sr(sWS,4)}, s{t2} offen sc1")
a(f"buffer_store_dwordx4 {vr(120,4)}, v{vL16}, {sr(sWS,4)}, s{t3} offen sc1")
if_group(True, lambda: post_flag(t0))
a("s_setprio 0")
cvt8(132, vAcc+32)
wphi_sign()
for u in range(2):
    a(f"{M32} {vr(140+16*u,16)}, {vr(vPhi+4*u,4)}, {vr(132+4*u,4)}, 0")
a(f"s_lshl_b32 s{t1}, s{t1}, 1")
a(f"s_add_u32 s{t2}, s{t1}, {PHQ}")
a(f"s_add_u32 s{t3}, s{t1}, {PHQ+131072}")
dual_softmax(140, 172, vTmp)
if_group(False, lambda: post_flag(t0))
stamp(2)
a(f"buffer_store_dwordx4 {vr(172,4)}, v{vL16}, {sr(sWS,4)}, s{t2} offen sc1")
a(f"buffer_store_dwordx4 {vr(176,4)}, v{vL16}, {sr(sWS,4)}, s{t2} offen offset:1024 sc1")
dual_softmax(156, 180, vTmp)
a(f"buffer_store_dwordx4 {vr(180,4)}, v{vL16}, {sr(sWS,4)}, s{t3} offen sc1")
a(f"buffer_store_dwordx4 {vr(184,4)}, v{vL16}, {sr(sWS,4)}, s{t3} offen offset:1024 sc1")
a(f"s_lshl_b32 s{sTq}, s{sHq}, 1")
a(f"s_add_u32 s{sTq}, s{sTq}, s{sCg}")
a(f"s_lshl_b32 s{sTq}, s{sTq}, 6")
a(f"s_add_u32 s{sTq}, s{sTq}, s{sT}")
a(f"s_lshl_b32 s{sTq}, s{sTq}, 3")
a(f"s_add_u32 s{sTq}, s{sTq}, {FLGP}")
a("s_branch L_p1done")

a.label("L_type2")
gemm([True, False, True], [(sWA, 2048), (sWB, 1024), (sWB, 2048)], True)
a("s_setprio 3")
wphi_stage()
a(f"v_bfe_u32 v2, v{vLane}, 4, 1")
a(f"v_lshlrev_b32 v2, 16, v2")
a(f"v_lshrrev_b32 v3, 5, v{vLane}")
a(f"v_lshl_add_u32 v2, v3, 8, v2")
a(f"v_and_b32 v3, 15, v{vLane}")
a(f"v_lshl_add_u32 v2, v3, 4, v2")
a(f"s_lshl_b32 s{t1}, s{sHa}, 16")
a(f"s_lshl_b32 s{t2}, s{sT}, 10")
a(f"s_add_u32 s{t1}, s{t1}, s{t2}")
a(f"s_add_u32 s{t2}, s{t1}, {VA}")
flagA_off(t0)
cvt8(116, vAcc)
a(f"buffer_store_dwordx4 {vr(116,4)}, v2, {sr(sWS,4)}, s{t2} offen sc1")
a(f"buffer_store_dwordx4 {vr(120,4)}, v2, {sr(sWS,4)}, s{t2} offen offset:512 sc1")
wphi_read()
if_group(True, lambda: post_flag(t0))
a("s_setprio 0")
cvt8(132, vAcc+16)
wphi_sign()
for u in range(2):
    a(f"{M32} {vr(140+16*u,16)}, {vr(vPhi+4*u,4)}, {vr(132+4*u,4)}, 0")
cvt8(188, vAcc+32)
for i in range(8): a(f"v_mov_b32 v{196+i}, 0x3f803f80")
for i in range(8): a(f"v_permlane16_swap_b32 v{188+i}, v{196+i}")
dual_softmax(140, 172, vTmp)
if_group(False, lambda: post_flag(t0))
stamp(2)
a(f"{M32} {vr(140,16)}, {vr(172,4)}, {vr(vI,4)}, 0")
a(f"{M32} {vr(140,16)}, {vr(176,4)}, {vr(vI+4,4)}, {vr(140,16)}")
dual_softmax(156, 180, vTmp)
a(f"{M32} {vr(156,16)}, {vr(180,4)}, {vr(vI,4)}, 0")
a(f"{M32} {vr(156,16)}, {vr(184,4)}, {vr(vI+4,4)}, {vr(156,16)}")
cvt8(172, 140)
a(f"{M32} {vr(204,16)}, {vr(172,4)}, {vr(188,4)}, 0")
a(f"{M32} {vr(204,16)}, {vr(176,4)}, {vr(192,4)}, {vr(204,16)}")
cvt8(180, 156)
a(f"{M32} {vr(220,16)}, {vr(180,4)}, {vr(196,4)}, 0")
a(f"{M32} {vr(220,16)}, {vr(184,4)}, {vr(200,4)}, {vr(220,16)}")
a(f"s_lshl_b32 s{t0}, s{sCg}, 15")
a(f"s_lshl_b32 s{t1}, s{sRt}, 12")
a(f"s_add_u32 s{t0}, s{t0}, s{t1}")
a(f"s_add_u32 s{t0}, s{t0}, {WO}")
a(f"v_add_u32 v2, s{t0}, v{vL16}")
for u in range(2):
    for q in range(4):
        a(f"ds_write_b128 v2, {vr(204+16*u+4*q,4)} offset:{u*16384+q*1024}")

a.label("L_p1done")
vK, vV, vS, vP, vO, vQ = 20, 52, 116, 148, 156, 188
vVld, vOw0, vOw1 = 4, 5, 6
sQoff, sDelta, sIt, sBm = sXoff, sWoff, sLdsX, sLdsW
a(f"v_mov_b32 v{vV}, 0x3f803f80")
for i in range(1, 64): a(f"v_mov_b32 v{vV+i}, v{vV}")
a(f"s_bfe_u32 s{t1}, s{sH}, 0x10001")
a(f"s_lshl_b32 s{t2}, s{sHq2}, 2")
a(f"s_add_u32 s{t2}, s{t2}, s{t1}")
a(f"s_lshl_b32 s{t2}, s{t2}, 9")
a(f"s_add_u32 s{t2}, s{t2}, {FLGA}")
a(f"s_lshl_b32 s{t3}, s{sWave}, 6")
a(f"s_add_u32 s{t3}, s{t3}, s{t2}")
a(f"s_lshl_b32 s{t0}, s{sC}, 6")
a(f"s_add_u32 s{t0}, s{t0}, s{t2}")
a(f"v_and_b32 v2, 7, v{vLane}")
a(f"v_lshlrev_b32 v2, 3, v2")
a(f"v_bfe_u32 v3, v{vLane}, 3, 1")
a(f"v_lshl_add_u32 v3, v3, 10, v2")
a(f"v_add_u32 v3, s{t3}, v3")
a(f"v_add_u32 v2, s{t0}, v2")
a(f"v_cmp_gt_u32 s[{t0}:{t1}], 16, v{vLane}")
a(f"v_cndmask_b32 v{vPoll}, v2, v3, s[{t0}:{t1}]")
a(f"v_lshrrev_b32 v2, 5, v{vLane}")
a(f"v_and_b32 v3, 15, v{vLane}")
a(f"v_lshlrev_b32 v3, 4, v3")
a(f"v_lshl_add_u32 v{vVld}, v2, 8, v3")
a(f"s_mul_i32 s{t0}, s{sW4}, 2304")
a(f"v_add_u32 v{vOw0}, s{t0}, v{vL16}")
a(f"v_lshlrev_b32 v2, 2, v{vLane}")
a(f"v_add_u32 v{vOw1}, s{t0}, v2")
a(f"s_lshl_b32 s{t1}, s{sH}, 16")
a(f"s_lshl_b32 s{t2}, s{sC}, 13")
a(f"s_add_u32 s{sQoff}, s{t1}, s{t2}")
a(f"s_add_u32 s{sQoff}, s{sQoff}, {QA}")
a(f"s_getpc_b64 {sr(sSUB,2)}")
a.label("L_pc2")
a(f"s_add_u32 s{sSUB}, s{sSUB}, L_reduce-L_pc2")
a(f"s_addc_u32 s{sSUB+1}, s{sSUB+1}, 0")

def flagP_if_type1():
    n = uid[0]; uid[0] += 1
    a(f"s_cmp_eq_u32 s{sType}, 0")
    a(f"s_cbranch_scc0 L_g{n}")
    post_flag(sTq)
    a.label(f"L_g{n}")

def load_kv():
    a(f"s_lshl_b32 s{t1}, s{sH}, 16")
    a(f"s_lshl_b32 s{t2}, s{sWave}, 13")
    a(f"s_add_u32 s{t1}, s{t1}, s{t2}")
    a(f"s_add_u32 s{t2}, s{t1}, {KA}")
    a(f"s_add_u32 s{t3}, s{t1}, {VA}")
    a(f"s_add_u32 s{t0}, s{t2}, 4096")
    a(f"s_add_u32 s{t1}, s{t3}, 4096")
    def ldK(kt):
        a(f"buffer_load_dwordx4 {vr(vK+4*kt,4)}, v{vL16}, {sr(sWS,4)}, s{t2 if kt < 4 else t0} offen offset:{(kt&3)*1024} sc1")
    a(f"buffer_load_dwordx4 {vr(vQ,4)}, v{vL16}, {sr(sWS,4)}, s{sQoff} offen sc1")
    ldK(0)
    for kt in range(8):
        a(f"s_mov_b64 exec, {sr(sVM,2)}")
        for m in range(2):
            a(f"buffer_load_dwordx4 {vr(vV+8*kt+4*m,4)}, v{vVld}, {sr(sWS,4)}, s{t3 if kt < 4 else t1} offen offset:{(kt&3)*1024+m*512} sc1")
        a("s_mov_b64 exec, -1")
        if kt < 7: ldK(kt+1)

def attn_loop(isY):
    L = "L_attnY" if isY else "L_attnX"
    a(f"s_mov_b32 s{sIt}, 0")
    a(f"s_mov_b32 s{sBm}, {0b1100 if isY else 0b0100}")
    a(".p2align 3")
    a.label(L)
    for n in range(16):
        par, kt = n >> 3, n & 7
        S = vS + 16*(n & 1); Sn = vS + 16*((n+1) & 1)
        O = vO + 16*par
        pk_ = (kt - 1) & 7
        Oo = vO + 16*(par ^ 1)
        Op = O if kt > 0 else Oo
        e = lambda i: a(f"v_exp_f32 v{S+i}, v{S+i}")
        c = lambda j: a(f"v_cvt_pk_bf16_f32 v{vP+j}, v{S+2*j}, v{S+2*j+1}")
        e(0); e(1)
        a(f"{M32} {vr(Op,16)}, {vr(vV+8*pk_+4,4)}, {vr(vP+4,4)}, {vr(Op,16)}")
        if kt == 0:
            a(f"s_add_u32 s{sQoff}, s{sQoff}, 1024")
            a(f"buffer_load_dwordx4 {vr(vQ+4*(par^1),4)}, v{vL16}, {sr(sWS,4)}, s{sQoff} offen sc1")
        e(2); e(3); c(0); e(4); e(5); c(1); e(6); e(7); c(2)
        if kt == 7: a("s_waitcnt vmcnt(0) lgkmcnt(0)" if isY else "s_waitcnt vmcnt(0)")
        elif par == 0 and not isY: a(f"s_waitcnt vmcnt({3*(6-kt)+3})")
        Qn = vQ + 4*par if kt < 7 else vQ + 4*(par ^ 1)
        a(f"{M32} {vr(Sn,16)}, {vr(vK+4*((kt+1)&7),4)}, {vr(Qn,4)}, 0")
        e(8); c(3); e(9); e(10)
        a(f"{M32} {vr(O,16)}, {vr(vV+8*kt,4)}, {vr(vP,4)}, {'0' if (kt == 0 and not isY) else vr(O,16)}")
        e(11); c(4)
        if kt == 1:
            a(f"ds_write_b128 v{vOw0}, {vr(Oo,4)}")
            a(f"ds_write_b128 v{vOw0}, {vr(Oo+4,4)} offset:1024")
            a(f"ds_write_b32 v{vOw1}, v{Oo+8} offset:2048")
        if kt == 3 and isY:
            a(f"ds_read_b128 {vr(Oo,4)}, v{vOw0} offset:{PSLOT}")
            a(f"ds_read_b128 {vr(Oo+4,4)}, v{vOw0} offset:{PSLOT+1024}")
            a(f"ds_read_b32 v{Oo+8}, v{vOw1} offset:{PSLOT+2048}")
        e(12); e(13); c(5)
        if kt == 1:
            a(f"v_add_u32 v{vOw0}, s{sDelta}, v{vOw0}")
            a(f"v_add_u32 v{vOw1}, s{sDelta}, v{vOw1}")
            a(f"s_mov_b32 s{sDelta}, {PSLOT}")
        if kt == 2 and par == 0:
            a(f"s_bitcmp1_b32 s{sBm}, s{sIt}")
            a(f"s_cbranch_scc0 {L}_nb")
            a("s_waitcnt lgkmcnt(0)")
            a("s_barrier")
            a.label(f"{L}_nb")
        e(14); e(15); c(6); c(7)
    a(f"s_add_u32 s{sIt}, s{sIt}, 1")
    a(f"s_cmp_lg_u32 s{sIt}, 4")
    a(f"s_cbranch_scc1 {L}")
    a(f"{M32} {vr(vO+16,16)}, {vr(vV+8*7+4,4)}, {vr(vP+4,4)}, {vr(vO+16,16)}")
    a(f"ds_write_b128 v{vOw0}, {vr(vO+16,4)}")
    a(f"ds_write_b128 v{vOw0}, {vr(vO+20,4)} offset:1024")
    a(f"ds_write_b32 v{vOw1}, v{vO+24} offset:2048")
    a("s_waitcnt lgkmcnt(0)")

def wo_dma(srd, nw=4):
    a(f"v_lshrrev_b32 v2, 3, v{vLane}")
    a(f"v_and_b32 v3, 7, v{vLane}")
    a(f"v_bfe_u32 v18, v{vLane}, 4, 1")
    a(f"v_lshlrev_b32 v18, 2, v18")
    a(f"v_xor_b32 v18, v18, v3")
    a(f"v_lshlrev_b32 v18, 4, v18")
    a(f"v_lshl_add_u32 v18, v2, 10, v18")
    a(f"s_lshl_b32 s{t0}, s{sW4}, 13")
    a(f"s_add_u32 s{t0}, s{t0}, s{sN0}")
    a(f"s_lshl_b32 s{t1}, s{sW4}, 10")
    a(f"s_add_u32 s{t1}, s{t1}, {WO}")
    n = uid[0]; uid[0] += 1
    a(f"s_mov_b32 s{t2}, {64//nw}")
    a.label(f"L_wo{n}")
    a(f"s_mov_b32 m0, s{t1}")
    a(f"s_add_u32 s{t1}, s{t1}, {1024*nw}")
    a(f"buffer_load_dwordx4 v18, {sr(srd,4)}, s{t0} offen lds")
    a(f"s_add_u32 s{t0}, s{t0}, {8192*nw}")
    a(f"s_sub_u32 s{t2}, s{t2}, 1")
    a(f"s_cmp_lg_u32 s{t2}, 0")
    a(f"s_cbranch_scc1 L_wo{n}")

vWoA = 7
def wo_addr(sct, skq=None):
    a(f"v_lshrrev_b32 v3, 5, v{vLane}")
    a(f"v_bfe_u32 v18, v{vLane}, 2, 2")
    a(f"v_lshl_add_u32 v18, v3, 2, v18")
    a(f"v_lshlrev_b32 v18, 7, v18")
    a(f"v_bfe_u32 v19, v{vLane}, 3, 1")
    a(f"v_xor_b32 v19, s{sct}, v19")
    a(f"v_lshl_add_u32 v18, v19, 6, v18")
    a(f"v_bfe_u32 v19, v{vLane}, 4, 1")
    a(f"v_lshl_add_u32 v18, v19, 5, v18")
    a(f"v_and_b32 v19, 3, v{vLane}")
    a(f"v_lshl_add_u32 v18, v19, 3, v18")
    if skq is None:
        a(f"v_add_u32 v{vWoA}, {WO}, v18")
    else:
        a(f"s_lshl_b32 s{t0}, s{skq}, 14")
        a(f"s_add_u32 s{t0}, s{t0}, {WO}")
        a(f"v_add_u32 v{vWoA}, s{t0}, v18")

vOf = 20
vW3 = 148
def poll32(flg, sTile):
    a(f"s_lshl_b32 s{t0}, s{sTile}, 8")
    a(f"s_add_u32 s{t0}, s{t0}, {flg}")
    a(f"v_and_b32 v2, 31, v{vLane}")
    a(f"v_lshl_add_u32 v{vPoll}, v2, 3, s{t0}")
    poll(vPoll, vPair)
def load32(base, sTile):
    a(f"s_lshl_b32 s{t0}, s{sTile}, 15")
    a(f"s_add_u32 s{t0}, s{t0}, {base}")
    for i in range(32):
        a(f"buffer_load_dwordx4 {vr(vOf+4*i,4)}, v{vL16}, {sr(sWS,4)}, s{t0} offen offset:{(i&3)*1024} sc1")
        if (i & 3) == 3 and i < 31: a(f"s_add_u32 s{t0}, s{t0}, 4096")
def proj32(acc, counted):
    def rd(i):
        for sec in range(2):
            a(f"ds_read_b64_tr_b16 {vr(vW3+4*(i%3)+2*sec,2)}, v{vWoA} offset:{i*2048+sec*1024}")
    rd(0); rd(1)
    for i in range(32):
        if i + 2 < 32: rd(i+2)
        w = f"lgkmcnt({2*min(2, 31-i)})"
        a(f"s_waitcnt vmcnt({31-i}) {w}" if counted else f"s_waitcnt {w}")
        a(f"{M32} {vr(acc,16)}, {vr(vW3+4*(i%3),4)}, {vr(vOf+4*i,4)}, {'0' if i == 0 else vr(acc,16)}")

vAccB, vAccA, vG = 160, 176, 192
a(f"s_cmp_ge_u32 s{sWave}, 4")
a("s_cbranch_scc1 L_Y")
a(f"v_add_u32 v{vOw0}, {7*PSLOT}, v{vOw0}")
a(f"v_add_u32 v{vOw1}, {7*PSLOT}, v{vOw1}")
a(f"s_mov_b32 s{sDelta}, {(-7*PSLOT) & 0xffffffff}")
stamp(3)
poll(vPoll, vPair)
stamp(4)
flagP_if_type1()
load_kv()
a("s_waitcnt lgkmcnt(0)")
a("s_barrier")
a("s_waitcnt vmcnt(23)")
a(f"{M32} {vr(vS,16)}, {vr(vK,4)}, {vr(vQ,4)}, 0")
a("s_nop 7")
a("s_nop 1")
attn_loop(False)
a("s_barrier")
stamp(5)
a("s_setprio 1")
a(f"s_and_b32 s{sRt}, s{sWave}, 1")
a(f"s_lshr_b32 s{sCg}, s{sWave}, 1")
a(f"s_lshl_b32 s{sT}, s{sCg}, 2")
a(f"s_add_u32 s{sT}, s{sT}, s{sTe}")
poll32(FLGOB, sT)
load32(OB, sT)
wo_addr(sRt)
a(f"s_lshl_b32 s{t0}, s{sCg}, 7")
a(f"s_add_u32 s{t0}, s{t0}, {GL}")
a(f"v_lshl_add_u32 v{vG}, v2, 2, s{t0}")
a(f"ds_read_b32 v{vG}, v{vG}")
proj32(vAccB, True)
a(f"v_sub_f32 v{vG+1}, 1.0, v{vG}")
for i in range(8): pk("mul", vAccB+2*i, vr(vAccB+2*i,2), vr(vG,2), None, "op_sel:[0,1] op_sel_hi:[1,1]")
stamp(6)
a("s_barrier")
a(f"s_cmp_ge_u32 s{sWave}, 2")
a("s_cbranch_scc0 L_Xearly")
a(f"v_and_b32 v2, 31, v{vLane}")
a(f"v_mul_u32_u24 v2, 272, v2")
a(f"v_lshrrev_b32 v3, 5, v{vLane}")
a(f"v_lshl_add_u32 v2, v3, 4, v2")
a(f"s_lshl_b32 s{t0}, s{sRt}, 7")
a(f"s_add_u32 s{t0}, s{t0}, {PARK}")
a(f"v_add_u32 v2, s{t0}, v2")
for j in range(4): a(f"ds_write_b128 v2, {vr(vAccB+4*j,4)} offset:{j*32}")
a(f"s_lshl_b32 s{sTq}, s{sRt}, 1")
a(f"s_swappc_b64 {sr(sRET,2)}, {sr(sSUB,2)}")
a(f"s_add_u32 s{sTq}, s{sTq}, 1")
a(f"s_swappc_b64 {sr(sRET,2)}, {sr(sSUB,2)}")
a("s_waitcnt vmcnt(0) lgkmcnt(0)")
a("s_barrier")
a("s_branch L_Xjoin")
a.label("L_Xearly")
wo_dma(sWOA, 2)
a("s_waitcnt vmcnt(0)")
a("s_barrier")
poll32(FLGO, sTe)
load32(OA, sTe)
proj32(vAccA, True)
a(f"v_and_b32 v2, 31, v{vLane}")
a(f"v_lshlrev_b32 v2, 10, v2")
a(f"v_lshrrev_b32 v3, 5, v{vLane}")
a(f"v_lshl_add_u32 v2, v3, 4, v2")
a(f"s_lshl_b32 s{t0}, s{sTe}, 15")
a(f"s_add_u32 s{t0}, s{t0}, s{sN0}")
a(f"s_lshl_b32 s{t1}, s{sRt}, 6")
a(f"s_add_u32 s{t0}, s{t0}, s{t1}")
for i in range(8): pk("fma", vAccA+2*i, vr(vAccA+2*i,2), vr(vG,2), vr(vAccB+2*i,2), "op_sel:[0,0,0] op_sel_hi:[1,0,1]")
cvt8(vAccB, vAccA)
for jj in range(2):
    a(f"v_permlane32_swap_b32 v{vAccB+4*jj}, v{vAccB+4*jj+2}")
    a(f"v_permlane32_swap_b32 v{vAccB+4*jj+1}, v{vAccB+4*jj+3}")
for jj in range(2):
    a(f"buffer_store_dwordx4 {vr(vAccB+4*jj,4)}, v2, {sr(sOUT,4)}, s{t0} offen offset:{jj*32}")
a.label("L_Xjoin")
stamp(7)

def tail_prep():
    a(f"s_and_b32 s{sRt}, s{sWave}, 1")
    a(f"s_lshr_b32 s{sCg}, s{sWave}, 1")
    wo_addr(sRt, sCg)
    for i in range(8):
        for sec in range(2):
            a(f"ds_read_b64_tr_b16 {vr(100+4*i+2*sec,2)}, v{vWoA} offset:{i*2048+sec*1024}")
        if i == 3: a("s_waitcnt lgkmcnt(4)")
    a(f"s_add_u32 s{t0}, s{sTe}, 4")
    a(f"s_lshl_b32 s{t0}, s{t0}, 5")
    a(f"s_lshl_b32 s{t1}, s{sCg}, 3")
    a(f"s_add_u32 s{sT}, s{t0}, s{t1}")
    a(f"s_lshl_b32 s{t0}, s{sT}, 3")
    a(f"s_add_u32 s{t0}, s{t0}, {FLGO}")
    a(f"v_and_b32 v2, 7, v{vLane}")
    a(f"v_lshl_add_u32 v{vPoll}, v2, 3, s{t0}")
    a(f"s_lshl_b32 s{sT}, s{sT}, 10")
    a(f"s_add_u32 s{sT}, s{sT}, {OA}")
    a(f"v_and_b32 v2, 31, v{vLane}")
    a(f"v_mul_u32_u24 v2, 272, v2")
    a(f"v_lshrrev_b32 v3, 5, v{vLane}")
    a(f"v_lshl_add_u32 v2, v3, 4, v2")
    a(f"s_mul_i32 s{t0}, s{sCg}, 8704")
    a(f"s_lshl_b32 s{t1}, s{sRt}, 7")
    a(f"s_add_u32 s{t0}, s{t0}, s{t1}")
    a(f"v_add_u32 v8, s{t0}, v2")
    a(f"v_lshrrev_b32 v2, 4, v{vLane}")
    a(f"s_lshl_b32 s{t0}, s{sWave}, 2")
    a(f"v_add_u32 v2, s{t0}, v2")
    a(f"v_and_b32 v3, 15, v{vLane}")
    a(f"v_mul_u32_u24 v9, 272, v2")
    a(f"v_lshl_add_u32 v9, v3, 4, v9")
    a(f"v_lshlrev_b32 v10, 2, v2")
    a(f"v_add_u32 v10, {GL+128}, v10")
    a(f"v_lshlrev_b32 v11, 10, v2")
    a(f"v_lshl_add_u32 v11, v3, 3, v11")
    a(f"v_add_u32 v12, {PARK}, v9")

tail_prep()
a("s_waitcnt lgkmcnt(0)")
a("s_barrier")
stamp(8)
a(f"s_add_u32 s{sTq}, s{sWave}, 4")
a(f"s_swappc_b64 {sr(sRET,2)}, {sr(sSUB,2)}")
a("s_branch L_tail")

a.label("L_Y")
flagP_if_type1()
a("s_waitcnt lgkmcnt(0)")
a("s_barrier")
stamp(3)
a("s_setprio 1")
a(f"s_cmp_eq_u32 s{sType}, 0")
a("s_cbranch_scc1 L_Ynokv")
a(f"s_lshl_b32 s{t0}, s{sW4}, 14")
a(f"s_add_u32 s{t0}, s{t0}, {WO}")
a(f"v_add_u32 v3, s{t0}, v{vL16}")
for rt in range(4):
    for q in range(4):
        a(f"ds_read_b128 {vr(116+16*rt+4*q,4)}, v3 offset:{rt*4096+q*1024}")
    if rt == 2: a("s_waitcnt lgkmcnt(8)")
a(f"s_lshl_b32 s{t0}, s{sHq}, 2")
a(f"s_add_u32 s{t0}, s{t0}, s{sW4}")
a(f"s_lshl_b32 s{t0}, s{t0}, 4")
a(f"s_add_u32 s{t0}, s{t0}, s{sRb}")
a(f"s_lshl_b32 s{t2}, s{t0}, 12")
a(f"s_add_u32 s{t2}, s{t2}, {KVP}")
a(f"s_lshl_b32 s{t0}, s{t0}, 3")
a(f"s_add_u32 s{t0}, s{t0}, {FLGK}")
a("s_waitcnt lgkmcnt(0)")
for i in range(16): pk("add", 116+2*i, vr(116+2*i,2), vr(148+2*i,2))
for i in range(8): pk("add", 116+2*i, vr(116+2*i,2), vr(132+2*i,2))
for q in range(4):
    a(f"buffer_store_dwordx4 {vr(116+4*q,4)}, v{vL16}, {sr(sWS,4)}, s{t2} offen offset:{q*1024} sc1")
post_flag(t0)
a.label("L_Ynokv")
poll(vPoll, vPair)
load_kv()
a(f"s_lshl_b32 s{t0}, s{sH}, 7")
a(f"s_add_u32 s{t0}, s{t0}, {FLGK}")
a(f"v_lshlrev_b32 v2, 3, v{vLane}")
a(f"v_add_u32 v2, s{t0}, v2")
a(f"s_lshl_b32 s{sT}, s{sC}, 3")
a(f"s_lshl_b32 s{t0}, s{sW4}, 1")
a(f"s_add_u32 s{sT}, s{sT}, s{t0}")
a(f"s_lshr_b32 s{t0}, s{sH}, 1")
a(f"s_lshl_b32 s{t0}, s{t0}, 6")
a(f"s_add_u32 s{t0}, s{t0}, s{sT}")
a(f"s_lshl_b32 s{t0}, s{t0}, 3")
a(f"s_add_u32 s{t0}, s{t0}, {FLGP}")
a(f"v_and_b32 v3, 1, v{vLane}")
a(f"v_lshl_add_u32 v3, v3, 3, s{t0}")
a(f"v_cmp_gt_u32 s[{t0}:{t1}], 16, v{vLane}")
a(f"v_cndmask_b32 v{vPoll}, v3, v2, s[{t0}:{t1}]")
poll(vPoll, vPair)
stamp(4)
vKV, vPQ = 116, 196
a(f"s_lshl_b32 s{t0}, s{sH}, 16")
a(f"s_lshl_b32 s{t1}, s{sW4}, 10")
a(f"s_add_u32 s{t0}, s{t0}, s{t1}")
a(f"s_add_u32 s{t0}, s{t0}, {KVP}")
for rb in range(16):
    a(f"buffer_load_dwordx4 {vr(vKV+4*rb,4)}, v{vL16}, {sr(sWS,4)}, s{t0} offen sc1")
    if rb < 15: a(f"s_add_u32 s{t0}, s{t0}, 4096")
a(f"s_lshl_b32 s{t0}, s{sH}, 17")
a(f"s_lshl_b32 s{t1}, s{sT}, 11")
a(f"s_add_u32 s{t0}, s{t0}, s{t1}")
a(f"s_add_u32 s{t0}, s{t0}, {PHQ}")
for i in range(4):
    a(f"buffer_load_dwordx4 {vr(vPQ+4*i,4)}, v{vL16}, {sr(sWS,4)}, s{t0} offen offset:{i*1024} sc1")
a(f"s_lshr_b32 s{t0}, s{sW4}, 1")
a(f"s_lshl_b32 s{t0}, s{t0}, 10")
a(f"s_and_b32 s{t1}, s{sW4}, 1")
a(f"s_lshl_b32 s{t1}, s{t1}, 3")
a(f"s_add_u32 s{t0}, s{t0}, s{t1}")
a(f"s_add_u32 s{t0}, s{t0}, {KVX}")
a(f"v_add_u32 v2, s{t0}, v{vL16}")
a("s_waitcnt vmcnt(4)")
for st in (32, 16, 8, 4):
    for i in range(st//2): pk("add", vKV+2*i, vr(vKV+2*i,2), vr(vKV+st+2*i,2))
cvt8(vKV+4, vKV, 2)
a(f"ds_write_b64 v2, {vr(vKV+4,2)}")
vGx, vGw = 116, 212
a(f"v_lshrrev_b32 v2, 3, v{vLane}")
a(f"v_and_b32 v3, 7, v{vLane}")
a(f"v_lshlrev_b32 v3, 4, v3")
a(f"v_lshl_add_u32 v19, v2, 10, v3")
a(f"s_lshr_b32 s{t0}, s{sW4}, 1")
a(f"s_lshl_b32 s{t0}, s{t0}, 2")
a(f"s_add_u32 s{t0}, s{t0}, s{sTe}")
a(f"s_lshl_b32 s{t0}, s{t0}, 15")
a(f"s_and_b32 s{t1}, s{sW4}, 1")
a(f"s_lshl_b32 s{t1}, s{t1}, 14")
a(f"s_add_u32 s{t0}, s{t0}, s{t1}")
a(f"s_add_u32 s{t1}, s{t0}, 8192")
a("s_waitcnt lgkmcnt(0)")
for i in range(8):
    a(f"buffer_load_dwordx4 {vr(vGw+4*i,4)}, v3, {sr(sG,4)}, 0 offen offset:{i*128}")
for b in range(2):
    for i in range(8):
        a(f"buffer_load_dwordx4 {vr(vGx+32*b+4*i,4)}, v19, {sr(sX,4)}, s{t0 if b == 0 else t1} offen offset:{i*128}")
for i in range(4): a(f"v_mov_b32 v{8+i}, 0")
a("s_waitcnt vmcnt(0)")
for i in range(32):
    for b in range(2):
        d = 8 + 2*b + (i & 1)
        a(f"v_dot2_f32_bf16 v{d}, v{vGx+32*b+i}, v{vGw+i}, v{d}")
a("s_nop 2")
a("v_add_f32 v8, v8, v9")
a("v_add_f32 v9, v10, v11")
for m in ("quad_perm:[1,0,3,2]", "quad_perm:[2,3,0,1]", "row_half_mirror"):
    for r in (8, 9): a(f"v_add_f32_dpp v{r}, v{r}, v{r} {m} row_mask:0xf bank_mask:0xf")
pk("mul", 8, vr(8,2), sr(sL2E2,2))
for r in (8, 9): a(f"v_exp_f32 v{r}, -v{r}")
for r in (8, 9): a(f"v_add_f32 v{r}, 1.0, v{r}")
for r in (8, 9): a(f"v_rcp_f32 v{r}, v{r}")
a(f"s_lshl_b32 s{t0}, s{sW4}, 6")
a(f"s_add_u32 s{t0}, s{t0}, {GL}")
a(f"v_lshl_add_u32 v10, v2, 2, s{t0}")
a("ds_write_b32 v10, v8")
a("ds_write_b32 v10, v9 offset:32")
a(f"v_add_u32 v18, {KVX}, v{vL16}")
a("s_waitcnt lgkmcnt(0)")
stamp(5)
a("s_barrier")
a(f"ds_read_b128 {vr(vKV,4)}, v18")
a(f"ds_read_b128 {vr(vKV+4,4)}, v18 offset:1024")
a(f"s_lshl_b32 s{t0}, s{sT}, 5")
a(f"s_add_u32 s{t0}, s{t0}, s{sH}")
a(f"s_lshl_b32 s{t3}, s{t0}, 10")
a(f"s_add_u32 s{t3}, s{t3}, {OB}")
a(f"s_add_u32 s{t4}, s{t3}, 32768")
a(f"s_lshl_b32 s{sTq}, s{t0}, 3")
a(f"s_add_u32 s{sTq}, s{sTq}, {FLGOB}")
a("s_waitcnt lgkmcnt(0)")
for u in range(2):
    D = 124 + 16*u
    a(f"{M32} {vr(D,16)}, {vr(vKV,4)}, {vr(vPQ+8*u,4)}, 0")
    a(f"{M32} {vr(D,16)}, {vr(vKV+4,4)}, {vr(vPQ+8*u+4,4)}, {vr(D,16)}")
for u in range(2):
    D = 124 + 16*u
    a(f"v_add_f32 v{D+8}, {f32(1e-6)}, v{D+8}")
    a(f"v_rcp_f32 v{D+8}, v{D+8}")
    for i in range(4): pk("mul", D+2*i, vr(D+2*i,2), vr(D+8,2), None, "op_sel:[0,0] op_sel_hi:[1,0]")
    cvt8(D+12, D, 4)
    a(f"buffer_store_dwordx4 {vr(D+12,4)}, v{vL16}, {sr(sWS,4)}, s{t3 if u == 0 else t4} offen sc1")
post_flag(sTq, 256)
wo_dma(sWOB)
a(f"{M32} {vr(vS,16)}, {vr(vK,4)}, {vr(vQ,4)}, 0")
SPARE = PARK + 8704
a(f"v_mov_b32 v2, v{vOw0}")
a(f"v_mov_b32 v3, v{vOw1}")
a(f"v_add_u32 v{vOw0}, {SPARE}, v{vOw0}")
a(f"v_add_u32 v{vOw1}, {SPARE}, v{vOw1}")
a(f"s_mov_b32 s{sDelta}, {(-SPARE) & 0xffffffff}")
a("s_waitcnt vmcnt(0)")
stamp(6)
a("s_setprio 0")
a("s_barrier")
a(f"ds_read_b128 {vr(vO,4)}, v2")
a(f"ds_read_b128 {vr(vO+4,4)}, v2 offset:1024")
a(f"ds_read_b32 v{vO+8}, v3 offset:2048")
a("s_waitcnt lgkmcnt(0)")
attn_loop(True)
stamp(7)
a("s_barrier")
stamp(8)
tail_prep()

a.label("L_tail")
poll(vPoll, vPair)
stamp(9)
a(f"s_add_u32 s{t0}, s{sT}, 4096")
for i in range(8):
    a(f"buffer_load_dwordx4 {vr(20+4*i,4)}, v{vL16}, {sr(sWS,4)}, s{sT if i < 4 else t0} offen offset:{(i&3)*1024} sc1")
a("ds_read_b32 v10, v10")
a(f"ds_read_b128 {vr(68,4)}, v12")
a("s_waitcnt lgkmcnt(0)")
for i in range(8):
    a(f"s_waitcnt vmcnt({7-i})")
    a(f"{M32} {vr(52,16)}, {vr(100+4*i,4)}, {vr(20+4*i,4)}, {'0' if i == 0 else vr(52,16)}")
a(f"s_add_u32 s{t0}, s{sTe}, 4")
a(f"s_lshl_b32 s{t0}, s{t0}, 15")
a(f"s_add_u32 s{t0}, s{t0}, s{sN0}")
for j in range(4): a(f"ds_write_b128 v8, {vr(52+4*j,4)} offset:{j*32}")
a("s_waitcnt lgkmcnt(0)")
a("s_barrier")
stamp(10)
for k in range(4): a(f"ds_read_b128 {vr(20+4*k,4)}, v9 offset:{k*8704}")
a("s_waitcnt lgkmcnt(0)")
for i in range(4): pk("add", 20+2*i, vr(20+2*i,2), vr(28+2*i,2))
for i in range(2): pk("add", 20+2*i, vr(20+2*i,2), vr(24+2*i,2))
for i in range(4): a(f"v_fma_f32 v{20+i}, v{20+i}, v10, v{68+i}")
cvt8(24, 20, 2)
a(f"buffer_store_dwordx2 {vr(24,2)}, v11, {sr(sOUT,4)}, s{t0} offen")
a(f"s_or_b32 s{t0}, s2, s{sWave}")
a(f"s_cmp_lg_u32 s{t0}, 0")
a("s_cbranch_scc1 L_noepoch")
a("s_mov_b64 exec, 1")
a(f"buffer_store_dwordx2 {vr(vTAG,2)}, v{vZERO}, {sr(sWS,4)}, 0 offen sc1")
a("s_mov_b64 exec, -1")
a.label("L_noepoch")
if DEBUG_TS:
    a("s_waitcnt vmcnt(0)")
    stamp(11)
    a(f"s_lshl_b32 s{t0}, s2, 3")
    a(f"s_add_u32 s{t0}, s{t0}, s{sWave}")
    a(f"s_lshl_b32 s{t0}, s{t0}, 6")
    a(f"s_add_u32 s{t0}, s{t0}, {TS}")
    for i in range(12): a(f"v_mov_b32 v{20+i}, s{sTS+i}")
    a("s_mov_b64 exec, 1")
    for i in range(3):
        a(f"buffer_store_dwordx4 {vr(20+4*i,4)}, v{vZERO}, {sr(sWS,4)}, s{t0} offen offset:{16*i}")
if opt("spin", 0):
    a(f"s_memtime s[{t0}:{t1}]")
    a("s_waitcnt lgkmcnt(0)")
    a.label("L_spin")
    a(f"s_memtime s[{t2}:{t3}]")
    a("s_waitcnt lgkmcnt(0)")
    a(f"s_sub_u32 s{t2}, s{t2}, s{t0}")
    a(f"s_cmp_lt_u32 s{t2}, {opt('spin', 0)}")
    a("s_cbranch_scc1 L_spin")
a.label("L_end")
a("s_endpgm")

vR = 20
a.label("L_reduce")
a(f"s_mul_i32 s{t0}, s{sTq}, {PSLOT}")
a(f"v_add_u32 v2, s{t0}, v{vL16}")
a(f"v_lshlrev_b32 v3, 2, v{vLane}")
a(f"v_add_u32 v3, s{t0}, v3")
for p in range(4):
    a(f"ds_read_b128 {vr(vR+12*p,4)}, v2 offset:{p*2304}")
    a(f"ds_read_b128 {vr(vR+12*p+4,4)}, v2 offset:{p*2304+1024}")
    a(f"ds_read_b32 v{vR+12*p+8}, v3 offset:{p*2304+2048}")
a(f"s_lshl_b32 s{t5}, s{sC}, 3")
a(f"s_add_u32 s{t5}, s{t5}, s{sTq}")
a(f"s_mov_b32 s{t2}, {f32(2.0**40)}")
a(f"s_mov_b32 s{t3}, {f32(2.0**120)}")
a("s_waitcnt lgkmcnt(6)")
for i in range(4): pk("add", vR+2*i, vr(vR+2*i,2), vr(vR+12+2*i,2))
a(f"v_add_f32 v{vR+8}, v{vR+8}, v{vR+20}")
a("s_waitcnt lgkmcnt(0)")
for i in range(4): pk("add", vR+24+2*i, vr(vR+24+2*i,2), vr(vR+36+2*i,2))
a(f"v_add_f32 v{vR+32}, v{vR+32}, v{vR+44}")
a(f"v_add_f32 v{vR+8}, v{vR+8}, v{vR+32}")
for i in range(4): pk("add", vR+2*i, vr(vR+2*i,2), vr(vR+24+2*i,2))
a(f"v_cmp_le_f32 vcc, 1.0, v{vR+8}")
a(f"v_cmp_ge_f32 s[{t0}:{t1}], s{t2}, v{vR+8}")
a(f"v_add_f32 v2, abs(v{vR}), abs(v{vR+1})")
a(f"v_add_f32 v3, abs(v{vR+2}), abs(v{vR+3})")
for i in range(4, 8): a(f"v_add_f32 v{2+(i&1)}, v{2+(i&1)}, abs(v{vR+i})")
a(f"s_and_b64 vcc, vcc, s[{t0}:{t1}]")
a(f"v_add_f32 v2, v2, v3")
a(f"v_cmp_ge_f32 s[{t0}:{t1}], s{t3}, v2")
a(f"s_and_b64 vcc, vcc, s[{t0}:{t1}]")
a(f"s_cmp_eq_u64 vcc, -1")
a("s_cbranch_scc1 L_slow" if FORCE_SLOW else "s_cbranch_scc0 L_slow")
a.label("L_norm")
a(f"v_rcp_f32 v{vR+8}, v{vR+8}")
a(f"s_lshl_b32 s{t0}, s{t5}, 5")
a(f"s_add_u32 s{t0}, s{t0}, s{sH}")
a(f"s_lshl_b32 s{t1}, s{t0}, 10")
a(f"s_add_u32 s{t2}, s{t1}, {OA}")
for i in range(4): pk("mul", vR+2*i, vr(vR+2*i,2), vr(vR+8,2), None, "op_sel:[0,0] op_sel_hi:[1,0]")
cvt8(vR+12, vR, 4)
a(f"buffer_store_dwordx4 {vr(vR+12,4)}, v{vL16}, {sr(sWS,4)}, s{t2} offen sc1")
a(f"s_lshl_b32 s{t0}, s{t0}, 3")
a(f"s_add_u32 s{t0}, s{t0}, {FLGO}")
post_flag(t0)
a(f"s_setpc_b64 {sr(sRET,2)}")

a.label("L_slow")
sQ_, sK_, sV_, sS_, sP_, sO_, sM_, sm_ = 32, 36, 40, 48, 64, 72, 196, 212
a(f"s_lshl_b32 s{t0}, s{sH}, 16")
a(f"s_lshl_b32 s{t1}, s{t5}, 10")
a(f"s_add_u32 s{t1}, s{t1}, s{t0}")
a(f"s_add_u32 s{t1}, s{t1}, {QA}")
a(f"buffer_load_dwordx4 {vr(sQ_,4)}, v{vL16}, {sr(sWS,4)}, s{t1} offen sc1")
a(f"s_add_u32 s{t1}, s{t0}, {KA}")
a(f"s_mov_b32 s{t2}, 64")
a(f"v_mov_b32 v{sm_}, 0xff7fffff")
a.label("L_slow1")
a(f"buffer_load_dwordx4 {vr(sK_,4)}, v{vL16}, {sr(sWS,4)}, s{t1} offen sc1")
a("s_waitcnt vmcnt(0)")
a(f"{M32} {vr(sS_,16)}, {vr(sK_,4)}, {vr(sQ_,4)}, 0")
for i in range(8): a(f"v_max3_f32 v{sm_}, v{sm_}, v{sS_+2*i}, v{sS_+2*i+1}")
a(f"s_add_u32 s{t1}, s{t1}, 1024")
a(f"s_sub_u32 s{t2}, s{t2}, 1")
a(f"s_cmp_lg_u32 s{t2}, 0")
a("s_cbranch_scc1 L_slow1")
a(f"v_mov_b32 v{sm_+1}, v{sm_}")
a(f"v_permlane32_swap_b32 v{sm_}, v{sm_+1}")
a(f"v_max_f32 v{sm_}, v{sm_}, v{sm_+1}")
for i in range(16): a(f"v_sub_f32 v{sM_+i}, 0, v{sm_}")
for i in range(16): a(f"v_mov_b32 v{sO_+i}, 0")
for i in range(8): a(f"v_mov_b32 v{sV_+i}, 0x3f803f80")
a(f"s_add_u32 s{t1}, s{t0}, {KA}")
a(f"s_add_u32 s{t3}, s{t0}, {VA}")
a(f"s_mov_b32 s{t2}, 64")
a.label("L_slow2")
a(f"buffer_load_dwordx4 {vr(sK_,4)}, v{vL16}, {sr(sWS,4)}, s{t1} offen sc1")
a(f"s_mov_b64 exec, {sr(sVM,2)}")
a(f"buffer_load_dwordx4 {vr(sV_,4)}, v{vVld}, {sr(sWS,4)}, s{t3} offen sc1")
a(f"buffer_load_dwordx4 {vr(sV_+4,4)}, v{vVld}, {sr(sWS,4)}, s{t3} offen offset:512 sc1")
a("s_mov_b64 exec, -1")
a("s_waitcnt vmcnt(0)")
a(f"{M32} {vr(sS_,16)}, {vr(sK_,4)}, {vr(sQ_,4)}, {vr(sM_,16)}")
for i in range(16): a(f"v_exp_f32 v{sS_+i}, v{sS_+i}")
cvt8(sP_, sS_)
a(f"{M32} {vr(sO_,16)}, {vr(sV_,4)}, {vr(sP_,4)}, {vr(sO_,16)}")
a(f"{M32} {vr(sO_,16)}, {vr(sV_+4,4)}, {vr(sP_+4,4)}, {vr(sO_,16)}")
a(f"s_add_u32 s{t1}, s{t1}, 1024")
a(f"s_add_u32 s{t3}, s{t3}, 1024")
a(f"s_sub_u32 s{t2}, s{t2}, 1")
a("s_nop 7")
a(f"s_cmp_lg_u32 s{t2}, 0")
a("s_cbranch_scc1 L_slow2")
for i in range(9): a(f"v_mov_b32 v{vR+i}, v{sO_+i}")
a("s_branch L_norm")
a.label("L_codeend_all")

assert SPARE + PSLOT <= 163840
body, nn = a.finish(verbose="-v" in sys.argv)
body = body.replace("L_slow:", "L_codeend:\nL_slow:")
hdr = open("cdna_kernels/" + NAME + ".s.ref").read().split("; Override launch")[0]
text = hdr + f"""; @launch grid=(256,1,1) block=(512,1,1) lds=163840
.amdgcn_target "amdgcn-amd-amdhsa--gfx950"
.text
.globl {NAME}_kernel
.p2align 8
.type {NAME}_kernel,@function
{NAME}_kernel:
{body}
.section .rodata,"a"
.p2align 6
.amdhsa_kernel {NAME}_kernel
  .amdhsa_next_free_vgpr 256
  .amdhsa_next_free_sgpr 102
  .amdhsa_accum_offset 256
  .amdhsa_group_segment_fixed_size 0
  .amdhsa_kernarg_size 88
  .amdhsa_user_sgpr_count 2
  .amdhsa_user_sgpr_kernarg_segment_ptr 1
  .amdhsa_system_sgpr_workgroup_id_x 1
.end_amdhsa_kernel
"""
out = [x for x in sys.argv[1:] if not x.startswith("-")]
path = out[0] if out else "cdna_kernels/" + NAME + ".s"
open(path, "w").write(text)
print("wrote", path, "nops inserted:", nn)
```

```python
import sys, struct
from asmlib import *

NAME = "gated_mix__mha_block__linear_kernel_hedgehog__prompt"
def opt(name, default):
    for x in sys.argv:
        if x.startswith(f"--{name}="): return int(x.split("=")[1])
    return default
DEBUG_TS = "--ts" in sys.argv
P1TS = "--p1" in sys.argv
FORCE_SLOW = "--force-slow" in sys.argv
LEAD = opt("lead", 3)
CODEPF = opt("codepf", 1)
MAP84 = opt("map84", 1)
ROT = opt("rot", 1)
WARM = opt("warm", 0)
ALPHA_IT = opt("alpha", 3)
PRO = opt("pro", 7)
RA = opt("ra", 2)
MAXL = opt("maxl", 2)

EPOCH = 0
FLGA = 0x1000; FLGP = 0x5000; FLGK = 0x7000; FLGO = 0x9000; FLGOB = 0xD000; GW = 0x20000
QA = 0x100000; KA = 0x300000; VA = 0x500000; PHQ = 0x700000; KVP = 0xB00000
OA = 0xD00000; OB = 0xF00000; TS = 0x1200000
WS_SIZE = 0x1400000
QL = 0; KVX = 8192; GL = 10240; PART = 16384; PSLOT = 9216; WO = 90112; SPARE = 155648
RED = PART
def wpos(slot): return (slot + 1) & 3

def f32(x): return "0x%08x" % struct.unpack("<I", struct.pack("<f", x))[0]
LOG2E = 1.4426950408889634
M32 = "v_mfma_f32_32x32x16_bf16"

sVM = 4
sRET = 6
sSUB = 8
sL2E2 = 10
sQS = 12
sTAG = 26
sX, sWA, sWB, sWS, sPHI, sOUT, sWOA, sWOB, sG = 28, 32, 36, 44, 48, 52, 56, 60, 64
sWave, sHq, sType, sRb, sRt, sCg, sH, sC, sT, sHa = 68, 69, 70, 71, 72, 73, 74, 75, 76, 77
t0, t1, t2, t3, t4, t5 = 78, 79, 80, 81, 82, 83
sXoff, sWoff, sLdsX, sLdsW = 84, 85, 86, 87
sCnt, sHq2 = 88, 89
sTe, sN0, sW4, sTq = 14, 15, 16, 17
sKs, sXb, sWb = 18, 19, 20
sTS = 90
sL2E = sL2E2

a = Asm()
LPTS = "--lp" in sys.argv
def lpstamp():
    if not LPTS: return
    a(f"s_memtime s[{t4}:{t5}]")
    for i in range(1, 10): a(f"s_mov_b32 s{sTS+i}, s{sTS+i+1}")
    a("s_waitcnt lgkmcnt(0)")
    a(f"s_mov_b32 s{sTS+10}, s{t4}")
def stamp(i, p1=False):
    if LPTS and i not in (0, 11): return
    if not DEBUG_TS or (p1 != P1TS and i not in (0, 11)): return
    a(f"{'s_memtime' if '--cyc' in sys.argv else 's_memrealtime'} s[{t4}:{t5}]")
    a("s_waitcnt lgkmcnt(0)")
    a(f"s_mov_b32 s{sTS+i}, s{t4}")

uid = [0]
def poll(vaddr, vpair):
    n = uid[0]; uid[0] += 1
    a(f"s_mov_b32 s{sCnt}, 0x100000")
    a.label(f"L_poll{n}")
    a(f"buffer_load_dwordx2 {vr(vpair,2)}, v{vaddr}, {sr(sWS,4)}, 0 offen sc1")
    a("s_waitcnt vmcnt(0)")
    a(f"v_cmp_ne_u64 vcc, {sr(sTAG,2)}, {vr(vpair,2)}")
    a(f"s_cmp_eq_u64 vcc, 0")
    a(f"s_cbranch_scc1 L_polld{n}")
    a(f"s_sub_u32 s{sCnt}, s{sCnt}, 1")
    a(f"s_cmp_eq_u32 s{sCnt}, 0")
    a(f"s_cbranch_scc1 L_polld{n}")
    a("s_sleep 1")
    a(f"s_branch L_poll{n}")
    a.label(f"L_polld{n}")

vTAG = 250; vZERO = 252; vPair = 248; vPoll = 253
def post_flag(soff, extra=None):
    a("s_waitcnt vmcnt(0)")
    a("s_mov_b64 exec, 1")
    a(f"buffer_store_dwordx2 {vr(vTAG,2)}, v{vZERO}, {sr(sWS,4)}, s{soff} offen sc1")
    if extra is not None:
        a(f"buffer_store_dwordx2 {vr(vTAG,2)}, v{vZERO}, {sr(sWS,4)}, s{soff} offen offset:{extra} sc1")
    a("s_mov_b64 exec, -1")

def if_group(isY, fn):
    n = uid[0]; uid[0] += 1
    a(f"s_cmp_ge_u32 s{sWave}, 4")
    a(f"s_cbranch_scc{0 if isY else 1} L_g{n}")
    fn()
    a.label(f"L_g{n}")

def cvt8(dst, src, n=8):
    for i in range(n):
        a(f"v_cvt_pk_bf16_f32 v{dst+i}, v{src+2*i}, v{src+2*i+1}")
def pk(op, d, x, y, z=None, mods=""):
    s = f"v_pk_{op}_f32 {vr(d,2)}, {x}, {y}"
    if z is not None: s += f", {z}"
    a(s + (" " + mods if mods else ""))

vLane = 1; vL16 = 17
vPhiRaw = 4
vXa0, vXa1, vWa = 8, 9, 10
vXr = 11; vWr = 15
vXf = 204; vWf = 216; vAcc = 52
vXf = 20; vWf = 208
vI = 100; vPhi = 108

a("s_cmp_ge_u32 s2, 256")
a("s_cbranch_scc1 L_end")
if opt("until", 0): a("s_memrealtime s[100:101]")
for (d, off) in ((sX, 0), (sWA, 8), (sWB, 32), (sWS, 80), (sPHI, 40), (sWOA, 16), (sWOB, 48), (sG, 56), (sOUT, 64)):
    a(f"s_load_dwordx2 {sr(d,2)}, s[0:1], {off}")
if CODEPF:
    a(f"s_getpc_b64 s[{t0}:{t1}]")
    a.label("L_pc")
    a("v_lshlrev_b32 v2, 6, v0")
    a("v_min_u32 v2, L_codeend-L_pc-4, v2")
    a(f"global_load_dword v3, v2, s[{t0}:{t1}]")
a("v_lshrrev_b32 v2, 6, v0")
a(f"v_and_b32 v{vLane}, 63, v0")
a(f"v_readfirstlane_b32 s{sWave}, v2")
a(f"s_and_b32 s{sHq2}, s2, 7")
a(f"s_lshr_b32 s{t0}, s2, 3")
if MAP84:
    a(f"s_and_b32 s{sType}, s{t0}, 1")
    a(f"s_bfe_u32 s{t1}, s{t0}, 0x10001")
    a(f"s_and_b32 s{sHq}, s2, 6")
    a(f"s_add_u32 s{sHq}, s{sHq}, s{t1}")
    a(f"s_and_b32 s{t1}, s2, 1")
    a(f"s_lshl_b32 s{t1}, s{t1}, 3")
    a(f"s_lshr_b32 s{sRb}, s{t0}, 2")
    a(f"s_add_u32 s{sRb}, s{sRb}, s{t1}")
else:
    a(f"s_mov_b32 s{sHq}, s{sHq2}")
    a(f"s_and_b32 s{sType}, s{t0}, 1")
    a(f"s_lshr_b32 s{sRb}, s{t0}, 1")
a(f"v_lshrrev_b32 v2, 3, v{vLane}")
a(f"v_and_b32 v19, 7, v{vLane}")
a(f"v_bfe_u32 v18, v{vLane}, 4, 2")
a(f"v_xor_b32 v18, v18, v19")
a(f"v_lshlrev_b32 v18, 4, v18")
a(f"v_lshl_add_u32 v{vXa0}, v2, 10, v18")
a(f"v_xor_b32 v{vXa1}, 64, v{vXa0}")
a(f"v_add_u32 v{vXa1}, 7168, v{vXa1}")
a(f"v_bfe_u32 v18, v{vLane}, 4, 1")
a(f"v_lshlrev_b32 v18, 2, v18")
a(f"v_xor_b32 v18, v18, v19")
a(f"v_lshlrev_b32 v18, 4, v18")
a(f"v_mul_u32_u24 v{vWa}, 3072, v2")
a(f"v_add_u32 v{vWa}, v{vWa}, v18")
a(f"s_lshl_b32 s{sXoff}, s{sRb}, 17")
a(f"s_lshl_b32 s{t1}, s{sWave}, 14")
a(f"s_add_u32 s{sXoff}, s{sXoff}, s{t1}")
a(f"s_mul_i32 s{sWoff}, s{sWave}, {8*3072}")
a(f"s_lshl_b32 s{t1}, s{sHq}, 7")
a(f"s_add_u32 s{sWoff}, s{sWoff}, s{t1}")
if ROT:
    if MAP84:
        a(f"s_and_b32 s{t1}, s{t0}, 3")
        a(f"s_lshl_b32 s{t1}, s{t1}, 1")
    else:
        a(f"s_lshl_b32 s{t1}, s{sType}, 2")
    a(f"s_add_u32 s{sKs}, s{sRb}, s{t1}")
    a(f"s_and_b32 s{sKs}, s{sKs}, 7")
    a(f"s_mov_b32 s{sXb}, s{sXoff}")
    a(f"s_mov_b32 s{sWb}, s{sWoff}")
    a(f"s_lshl_b32 s{t1}, s{sKs}, 7")
    a(f"s_add_u32 s{sXoff}, s{sXb}, s{t1}")
    a(f"s_mul_i32 s{t1}, s{sKs}, {64*3072}")
    a(f"s_add_u32 s{sWoff}, s{sWb}, s{t1}")
a(f"s_lshl_b32 s{sLdsX}, s{sWave}, 11")
a(f"s_lshl_b32 s{sLdsW}, s{sWave}, 10")
a(f"s_add_u32 s{sLdsW}, s{sLdsW}, 65536")
for (d, n) in ((sX, 2048*512*2), (sWA, 512*1536*2), (sWB, 512*1536*2)):
    a(f"s_mov_b32 s{d+2}, {n}")
    a(f"s_mov_b32 s{d+3}, 0x20000")
a(f"s_cmp_eq_u32 s{sType}, 0")
a("s_waitcnt lgkmcnt(0)")
a("s_cbranch_scc0 L_type2")

def dma_ops(slot, segs):
    g = []
    g.append([f"s_add_u32 m0, s{sLdsX}, {slot*16384}", "s_nop 0",
              f"buffer_load_dwordx4 v{vXa0}, {sr(sX,4)}, s{sXoff} offen lds"])
    g.append([f"buffer_load_dwordx4 v{vXa1}, {sr(sX,4)}, s{sXoff} offen offset:1024 lds"] +
             ([f"s_add_u32 s{sKs}, s{sKs}, 1", f"s_and_b32 s{sKs}, s{sKs}, 7", f"s_lshl_b32 s{sXoff}, s{sKs}, 7", f"s_add_u32 s{sXoff}, s{sXoff}, s{sXb}"]
              if ROT else [f"s_add_u32 s{sXoff}, s{sXoff}, 128"]))
    for seg, (sw, col) in enumerate(segs):
        x = [f"s_add_u32 m0, s{sLdsW}, {wpos(slot)*24576 + seg*8192 - col}", "s_nop 0",
             f"buffer_load_dwordx4 v{vWa}, {sr(sw,4)}, s{sWoff} offen offset:{col} lds"]
        if seg == 2:
            if ROT: x += [f"s_mul_i32 s{sWoff}, s{sKs}, {64*3072}", f"s_add_u32 s{sWoff}, s{sWoff}, s{sWb}"]
            else: x.append(f"s_add_u32 s{sWoff}, s{sWoff}, {64*3072}")
        g.append(x)
    return g
def dma_stage(slot, segs):
    for g in dma_ops(slot, segs):
        for x in g: a(x)

def setup1():
    a(f"s_load_dwordx2 {sr(sTAG,2)}, {sr(sWS,2)}, {EPOCH}")
    for (d, n) in ((sWS, WS_SIZE), (sPHI, 32*512), (sOUT, 2048*512*2), (sWOA, 512*512*2), (sWOB, 512*512*2), (sG, 1024)):
        a(f"s_mov_b32 s{d+2}, {n}")
        a(f"s_mov_b32 s{d+3}, 0x20000")
    a(f"s_lshr_b32 s{t0}, s2, 3")
    a(f"s_and_b32 s{t1}, s{t0}, 3")
    a(f"s_lshl_b32 s{sH}, s{sHq2}, 2")
    a(f"s_add_u32 s{sH}, s{sH}, s{t1}")
    a(f"s_lshr_b32 s{sC}, s{t0}, 2")
    a(f"s_lshl_b32 s{sTe}, s{sHq2}, 2")
    a(f"s_and_b32 s{t1}, s{t0}, 1")
    a(f"s_add_u32 s{sTe}, s{sTe}, s{t1}")
    a(f"s_lshl_b32 s{sTe}, s{sTe}, 1")
    a(f"s_and_b32 s{t1}, s{sWave}, 1")
    a(f"s_add_u32 s{sTe}, s{sTe}, s{t1}")
    a(f"s_lshr_b32 s{sN0}, s{t0}, 1")
    a(f"s_lshl_b32 s{sN0}, s{sN0}, 6")
    a(f"s_and_b32 s{sRt}, s{sWave}, 3")
    a(f"s_mov_b32 s{sW4}, s{sRt}")
    a(f"s_lshr_b32 s{sCg}, s{sWave}, 2")
    a(f"s_lshl_b32 s{sT}, s{sRb}, 2")
    a(f"s_add_u32 s{sT}, s{sT}, s{sRt}")
    a(f"s_lshl_b32 s{sHa}, s{sHq}, 2")
    a(f"s_lshl_b32 s{t1}, s{sCg}, 1")
    a(f"s_add_u32 s{sHa}, s{sHa}, s{t1}")
    a(f"v_lshlrev_b32 v{vL16}, 4, v{vLane}")
    a(f"s_lshl_b32 s{t0}, s{sHa}, 9")
    a(f"buffer_load_dwordx4 {vr(vPhiRaw,4)}, v{vL16}, {sr(sPHI,4)}, s{t0} offen")
    a(f"s_lshl_b32 s{sTq}, s2, 3")
    a(f"s_add_u32 s{sTq}, s{sTq}, s{sWave}")
    a(f"s_lshl_b32 s{t0}, s{sTq}, 10")
    a(f"buffer_load_dwordx4 {vr(120,4)}, v{vL16}, {sr(sX,4)}, s{t0} offen")
    a(f"buffer_load_dwordx4 {vr(124,4)}, v{vL16}, {sr(sG,4)}, 0 offen")
    a(f"v_and_b32 v2, 31, v{vLane}")
    a(f"v_lshrrev_b32 v116, 5, v{vLane}")
    a(f"v_bfe_u32 v18, v{vLane}, 1, 3")
    a(f"v_xor_b32 v18, v18, v116")
    a(f"v_lshlrev_b32 v18, 4, v18")
    a(f"s_lshl_b32 s{t0}, s{sRt}, 12")
    a(f"v_lshl_add_u32 v18, v2, 7, v18")
    a(f"v_add_u32 v{vXr}, s{t0}, v18")
    for kk in (1, 2, 3): a(f"v_xor_b32 v{vXr+kk}, {kk*32}, v{vXr}")
    a(f"v_bfe_u32 v18, v{vLane}, 2, 2")
    a(f"v_lshl_add_u32 v18, v116, 3, v18")
    a(f"v_lshlrev_b32 v18, 7, v18")
    a(f"v_bfe_u32 v19, v{vLane}, 3, 1")
    a(f"v_xor_b32 v19, s{sCg}, v19")
    a(f"v_lshl_add_u32 v18, v19, 6, v18")
    a(f"v_bfe_u32 v19, v{vLane}, 4, 1")
    a(f"v_lshl_add_u32 v18, v19, 5, v18")
    a(f"v_and_b32 v19, 3, v{vLane}")
    a(f"v_lshl_add_u32 v18, v19, 3, v18")
    a(f"v_add_u32 v{vWr}, 65536, v18")
    a(f"v_add_u32 v{vWr+1}, {65536+49152}, v18")

def setup2(ident):
    if ident:
        a(f"v_lshlrev_b32 v18, 2, v116")
        a(f"v_sub_u32 v18, v2, v18")
        a(f"v_mov_b32 v19, 0x3f80")
        a(f"v_mov_b32 v117, 0x3f800000")
        for r in range(8):
            tt = 8*((r & 3) >> 1) + 2*(r & 1) + 16*(r >> 2)
            a(f"v_cmp_eq_u32 s[{t0}:{t1}], {tt}, v18")
            a(f"v_cmp_eq_u32 s[{t2}:{t3}], {tt+1}, v18")
            a(f"v_cndmask_b32 v{vI+r}, 0, v19, s[{t0}:{t1}]")
            a(f"v_cndmask_b32 v{vI+r}, v{vI+r}, v117, s[{t2}:{t3}]")
    a(f"v_mov_b32 v{vZERO}, 0")
    a(f"s_mov_b32 s{sL2E2}, {f32(LOG2E)}")
    a(f"s_mov_b32 s{sL2E2+1}, {f32(LOG2E)}")
    a(f"s_mov_b32 s{sQS}, {f32(0.25*LOG2E)}")
    a(f"s_mov_b32 s{sQS+1}, {f32(0.25*LOG2E)}")
    a(f"s_mov_b32 s{sVM}, 0xffff")
    a(f"s_mov_b32 s{sVM+1}, 0xffff")
    a(f"s_lshl_b32 s{t0}, s{sWave}, 10")
    a(f"s_add_u32 s{t0}, s{t0}, {PART}")
    a(f"v_bfe_u32 v18, v{vLane}, 2, 2")
    a(f"v_lshl_add_u32 v18, v116, 2, v18")
    a(f"v_lshlrev_b32 v18, 5, v18")
    a(f"v_and_b32 v19, 3, v{vLane}")
    a(f"v_lshl_add_u32 v18, v19, 3, v18")
    a(f"v_add_u32 v18, s{t0}, v18")
    a(f"v_bfe_u32 v19, v{vLane}, 4, 1")
    a(f"v_mul_u32_u24 v19, 0x8000, v19")
    a(f"v_lshl_or_b32 v19, v19, 16, v19")
    a(f"v_add_u32 v117, s{t0}, v{vL16}")
    a("s_waitcnt lgkmcnt(0)")
    a(f"s_add_u32 s{sTAG}, s{sTAG}, 0x9e3779b9")
    a(f"s_addc_u32 s{sTAG+1}, s{sTAG+1}, 0x7f4a7c15")
    a(f"v_mov_b32 v{vTAG}, s{sTAG}")
    a(f"v_mov_b32 v{vTAG+1}, s{sTAG+1}")

NB = RA + 1
def rd_x(i):
    s, kk = i >> 2, i & 3
    a(f"ds_read_b128 {vr(vXf+4*(i%NB),4)}, v{vXr+kk} offset:{(s&3)*16384}")
def rd_w(i, seg):
    s, kk = i >> 2, i & 3
    p = wpos(s & 3)
    for sec in range(2):
        off = (p & 1)*24576 + seg*8192 + kk*2048 + sec*512
        a(f"ds_read_b64_tr_b16 {vr(vWf+12*(i%NB)+4*seg+2*sec,2)}, v{vWr+(p>>1)} offset:{off}")

def gate_ops():
    g = [[f"v_dot2_f32_bf16 v128, v120, v124, 0", f"v_dot2_f32_bf16 v129, v121, v125, 0"],
         [f"v_dot2_f32_bf16 v128, v122, v126, v128", f"v_dot2_f32_bf16 v129, v123, v127, v129"],
         [f"s_lshl_b32 s{sTq}, s{sTq}, 2", f"s_add_u32 s{sTq}, s{sTq}, {GW}"],
         ["v_add_f32 v128, v128, v129"]]
    for m in ("quad_perm:[1,0,3,2]", "quad_perm:[2,3,0,1]", "row_half_mirror", "row_mirror"):
        g.append([f"v_add_f32_dpp v128, v128, v128 {m} row_mask:0xf bank_mask:0xf"])
    g.append(["v_mov_b32 v129, v128"])
    g.append(["v_permlane16_swap_b32 v128, v129"])
    g.append(["v_add_f32 v128, v128, v129", "v_mov_b32 v129, v128"])
    g.append(["v_permlane32_swap_b32 v128, v129"])
    g.append(["v_add_f32 v128, v128, v129", f"v_mul_f32 v128, s{sL2E}, v128"])
    g.append(["v_exp_f32 v128, -v128"])
    g.append(["v_add_f32 v128, 1.0, v128"])
    g.append(["v_rcp_f32 v128, v128"])
    g.append(["s_mov_b64 exec, 1", f"buffer_store_dword v128, v{vZERO}, {sr(sWS,4)}, s{sTq} offen sc1", "s_mov_b64 exec, -1"])
    return g

def gemm(vtype, segs, ident):
    G = []
    for s in range(8): G += dma_ops(s & 3, segs)
    ng = [0]
    def issue(n):
        for _ in range(n):
            for x in G[ng[0]]: a(x)
            ng[0] += 1
    stamp(0)
    issue(5)
    setup1()
    issue(PRO - 5)
    setup2(ident)
    stamp(1, True)
    a(f"s_waitcnt vmcnt({PRO-5+3})")
    a("s_barrier")
    stamp(2, True)
    for i in range(RA):
        rd_x(i)
        for seg in range(3): rd_w(i, seg)
    vis = 0
    gate_at = [None]
    gops = gate_ops()
    for i in range(32):
        nx = i + RA
        if nx < 32 and (nx & 3) == 0:
            vis = nx >> 2
            assert ng[0] >= 5*(vis+1), (i, ng[0])
            extra = 0
            a(f"s_waitcnt vmcnt({ng[0] - 5*(vis+1) + extra})" + (" lgkmcnt(0)" if MAXL == 3 else ""))
            a("s_barrier")
            stamp(2+vis, True)
        for seg in range(3):
            later = 2*(2-seg) + 7*(min(i+RA-1, 31) - i)
            if nx < 32: later += (0, 3, 5)[seg]
            a(f"s_waitcnt lgkmcnt({later})")
            b = i % NB
            x = vr(vXf+4*b, 4); w = vr(vWf+12*b+4*seg, 4); d = vr(vAcc+16*seg, 16)
            c = "0" if i == 0 else d
            if vtype[seg]: a(f"{M32} {d}, {x}, {w}, {c}")
            else: a(f"{M32} {d}, {w}, {x}, {c}")
            if nx < 32:
                if seg == 0: rd_x(nx)
                rd_w(nx, seg)
            if seg >= 1 and ng[0] < 40 and ng[0] // 5 <= vis + MAXL: issue(1)
            if vis >= 1 and gops:
                for x in gops.pop(0):
                    a(x)
                    if x.startswith("buffer_store"): gate_at[0] = ng[0]
    stamp(10, True)
    stamp(1)

def wphi_stage():
    a(f"ds_write_b128 v117, {vr(vPhiRaw,4)}")
def wphi_read():
    a("s_waitcnt lgkmcnt(0)")
    for u in range(2):
        for sec in range(2):
            a(f"ds_read_b64_tr_b16 {vr(vPhi+4*u+2*sec,2)}, v18 offset:{u*512+sec*256}")
def wphi_sign():
    a("s_waitcnt lgkmcnt(0)")
    for i in range(8): a(f"v_xor_b32 v{vPhi+i}, v19, v{vPhi+i}")

def dual_softmax(D, PH, tmp):
    mp, mn = tmp, tmp+1
    H = ((mp, 0), (mn, 8))
    for (m, o) in H: a(f"v_max3_f32 v{m}, v{D+o}, v{D+o+1}, v{D+o+2}")
    for (m, o) in H: a(f"v_max3_f32 v{m}, v{m}, v{D+o+3}, v{D+o+4}")
    for (m, o) in H: a(f"v_max3_f32 v{m}, v{m}, v{D+o+5}, v{D+o+6}")
    for (m, o) in H: a(f"v_max_f32 v{m}, v{m}, v{D+o+7}")
    a(f"v_permlane32_swap_b32 v{mp}, v{mn}")
    a(f"v_max_f32 v{mp}, v{mp}, v{mn}")
    a(f"v_mul_f32 v{mp}, s{sL2E}, v{mp}")
    a(f"v_mov_b32 v{mn}, v{mp}")
    a(f"v_permlane32_swap_b32 v{mp}, v{mn}")
    for i in range(8):
        hi = 1 if i >= 4 else 0
        pk("fma", D+2*i, vr(D+2*i,2), sr(sL2E2,2), vr(mp,2), f"op_sel:[0,0,{hi}] op_sel_hi:[1,1,{hi}] neg_lo:[0,0,1] neg_hi:[0,0,1]")
    for i in range(16): a(f"v_exp_f32 v{D+i}, v{D+i}")
    s1, s2 = tmp+2, tmp+4
    for (s, o) in ((s1, 0), (s2, 8)): pk("add", s, vr(D+o,2), vr(D+o+2,2))
    for (s, o) in ((s1, 0), (s2, 8)): pk("add", s, vr(s,2), vr(D+o+4,2))
    for (s, o) in ((s1, 0), (s2, 8)): pk("add", s, vr(s,2), vr(D+o+6,2))
    a(f"v_add_f32 v{mp}, v{s1}, v{s1+1}")
    a(f"v_add_f32 v{mn}, v{s2}, v{s2+1}")
    a(f"v_permlane32_swap_b32 v{mp}, v{mn}")
    a(f"v_add_f32 v{mp}, v{mp}, v{mn}")
    a(f"v_rcp_f32 v{mp}, v{mp}")
    a(f"v_mov_b32 v{mn}, v{mp}")
    a(f"v_permlane32_swap_b32 v{mp}, v{mn}")
    for i in range(8):
        hi = 1 if i >= 4 else 0
        pk("mul", D+2*i, vr(D+2*i,2), vr(mp,2), None, f"op_sel:[0,{hi}] op_sel_hi:[1,{hi}]")
    cvt8(PH, D)

def flagA_off(dst):
    a(f"s_lshl_b32 s{dst}, s{sHq}, 1")
    a(f"s_add_u32 s{dst}, s{dst}, s{sType}")
    a(f"s_lshl_b32 s{dst}, s{dst}, 1")
    a(f"s_add_u32 s{dst}, s{dst}, s{sCg}")
    a(f"s_lshl_b32 s{dst}, s{dst}, 6")
    a(f"s_add_u32 s{dst}, s{dst}, s{sT}")
    a(f"s_lshl_b32 s{dst}, s{dst}, 3")
    a(f"s_add_u32 s{dst}, s{dst}, {FLGA}")

vTmp = 8
gemm([False, False, False], [(sWA, 0), (sWA, 1024), (sWB, 0)], False)
a("s_setprio 3")
wphi_stage()
a(f"s_lshl_b32 s{t1}, s{sHa}, 16")
a(f"s_lshl_b32 s{t2}, s{sT}, 10")
a(f"s_add_u32 s{t1}, s{t1}, s{t2}")
a(f"s_add_u32 s{t2}, s{t1}, {QA}")
a(f"s_add_u32 s{t3}, s{t1}, {QA+65536}")
flagA_off(t0)
for i in range(8): pk("mul", vAcc+2*i, vr(vAcc+2*i,2), sr(sQS,2))
cvt8(124, vAcc)
a(f"buffer_store_dwordx4 {vr(124,4)}, v{vL16}, {sr(sWS,4)}, s{t2} offen sc1")
a(f"buffer_store_dwordx4 {vr(128,4)}, v{vL16}, {sr(sWS,4)}, s{t3} offen sc1")
wphi_read()
a(f"s_add_u32 s{t2}, s{t1}, {KA}")
a(f"s_add_u32 s{t3}, s{t1}, {KA+65536}")
cvt8(116, vAcc+16)
a(f"buffer_store_dwordx4 {vr(116,4)}, v{vL16}, {sr(sWS,4)}, s{t2} offen sc1")
a(f"buffer_store_dwordx4 {vr(120,4)}, v{vL16}, {sr(sWS,4)}, s{t3} offen sc1")
post_flag(t0)
stamp(2)
a("s_setprio 0")
cvt8(132, vAcc+32)
wphi_sign()
for u in range(2):
    a(f"{M32} {vr(140+16*u,16)}, {vr(vPhi+4*u,4)}, {vr(132+4*u,4)}, 0")
dual_softmax(140, 172, vTmp)
dual_softmax(156, 180, vTmp)
a(f"s_lshl_b32 s{t0}, s{sRt}, 14")
a(f"s_lshl_b32 s{t1}, s{sCg}, 12")
a(f"s_add_u32 s{t0}, s{t0}, s{t1}")
a(f"s_add_u32 s{t0}, s{t0}, {WO}")
a(f"v_add_u32 v2, s{t0}, v{vL16}")
for q in range(4): a(f"ds_write_b128 v2, {vr(172+4*q,4)} offset:{q*1024}")
a("s_branch L_p1done")

a.label("L_type2")
gemm([True, False, True], [(sWA, 2048), (sWB, 1024), (sWB, 2048)], True)
a("s_setprio 3")
wphi_stage()
a(f"v_bfe_u32 v2, v{vLane}, 4, 1")
a(f"v_lshlrev_b32 v2, 16, v2")
a(f"v_lshrrev_b32 v3, 5, v{vLane}")
a(f"v_lshl_add_u32 v2, v3, 8, v2")
a(f"v_and_b32 v3, 15, v{vLane}")
a(f"v_lshl_add_u32 v2, v3, 4, v2")
a(f"s_lshl_b32 s{t1}, s{sHa}, 16")
a(f"s_lshl_b32 s{t2}, s{sT}, 10")
a(f"s_add_u32 s{t1}, s{t1}, s{t2}")
a(f"s_add_u32 s{t2}, s{t1}, {VA}")
flagA_off(t0)
cvt8(116, vAcc)
a(f"buffer_store_dwordx4 {vr(116,4)}, v2, {sr(sWS,4)}, s{t2} offen sc1")
a(f"buffer_store_dwordx4 {vr(120,4)}, v2, {sr(sWS,4)}, s{t2} offen offset:512 sc1")
wphi_read()
post_flag(t0)
stamp(2)
a("s_setprio 0")
cvt8(132, vAcc+16)
wphi_sign()
for u in range(2):
    a(f"{M32} {vr(140+16*u,16)}, {vr(vPhi+4*u,4)}, {vr(132+4*u,4)}, 0")
cvt8(188, vAcc+32)
for i in range(8): a(f"v_mov_b32 v{196+i}, 0x3f803f80")
for i in range(8): a(f"v_permlane16_swap_b32 v{188+i}, v{196+i}")
dual_softmax(140, 172, vTmp)
a(f"{M32} {vr(140,16)}, {vr(172,4)}, {vr(vI,4)}, 0")
a(f"{M32} {vr(140,16)}, {vr(176,4)}, {vr(vI+4,4)}, {vr(140,16)}")
dual_softmax(156, 180, vTmp)
a(f"{M32} {vr(156,16)}, {vr(180,4)}, {vr(vI,4)}, 0")
a(f"{M32} {vr(156,16)}, {vr(184,4)}, {vr(vI+4,4)}, {vr(156,16)}")
cvt8(172, 140)
a(f"{M32} {vr(204,16)}, {vr(172,4)}, {vr(188,4)}, 0")
a(f"{M32} {vr(204,16)}, {vr(176,4)}, {vr(192,4)}, {vr(204,16)}")
cvt8(180, 156)
a(f"{M32} {vr(220,16)}, {vr(180,4)}, {vr(196,4)}, 0")
a(f"{M32} {vr(220,16)}, {vr(184,4)}, {vr(200,4)}, {vr(220,16)}")
a(f"s_lshl_b32 s{t0}, s{sCg}, 15")
a(f"s_lshl_b32 s{t1}, s{sRt}, 12")
a(f"s_add_u32 s{t0}, s{t0}, s{t1}")
a(f"s_add_u32 s{t0}, s{t0}, {WO}")
a(f"v_add_u32 v2, s{t0}, v{vL16}")
for u in range(2):
    for q in range(4):
        a(f"ds_write_b128 v2, {vr(204+16*u+4*q,4)} offset:{u*16384+q*1024}")

a.label("L_p1done")
vK, vV, vS, vP, vO, vQ = 20, 52, 116, 148, 156, 188
vVld, vOw0, vOw1, vQa = 4, 5, 6, 13
sQoff, sDelta, sIt, sBm = sXoff, sWoff, sLdsX, sLdsW
a(f"v_and_b32 v2, 27, v{vLane}")
a(f"v_cmp_eq_u32 s[{t0}:{t1}], 16, v2")
a(f"v_mov_b32 v3, 0x3f803f80")
a(f"v_cndmask_b32 v{vV}, 0, v3, s[{t0}:{t1}]")
a(f"v_mov_b32 v{vV+1}, v{vV}")
for i in range(1, 32): a(f"v_pk_mov_b32 {vr(vV+2*i,2)}, {vr(vV,2)}, {vr(vV,2)}")
a(f"s_bfe_u32 s{t1}, s{sH}, 0x10001")
a(f"s_lshl_b32 s{t2}, s{sHq2}, 2")
a(f"s_add_u32 s{t2}, s{t2}, s{t1}")
a(f"s_lshl_b32 s{t2}, s{t2}, 9")
a(f"s_add_u32 s{t2}, s{t2}, {FLGA}")
a(f"s_lshl_b32 s{t3}, s{sWave}, 6")
a(f"s_add_u32 s{t3}, s{t3}, s{t2}")
a(f"s_lshl_b32 s{t0}, s{sC}, 6")
a(f"s_add_u32 s{t0}, s{t0}, s{t2}")
a(f"v_and_b32 v2, 7, v{vLane}")
a(f"v_lshlrev_b32 v2, 3, v2")
a(f"v_bfe_u32 v3, v{vLane}, 3, 1")
a(f"v_lshl_add_u32 v3, v3, 10, v2")
a(f"v_add_u32 v3, s{t3}, v3")
a(f"v_add_u32 v2, s{t0}, v2")
a(f"v_cmp_gt_u32 s[{t0}:{t1}], 16, v{vLane}")
a(f"v_cndmask_b32 v{vPoll}, v2, v3, s[{t0}:{t1}]")
a(f"v_lshrrev_b32 v2, 5, v{vLane}")
a(f"v_and_b32 v3, 15, v{vLane}")
a(f"v_lshlrev_b32 v3, 4, v3")
a(f"v_lshl_add_u32 v{vVld}, v2, 8, v3")
a(f"s_mul_i32 s{t0}, s{sW4}, 2304")
a(f"s_add_u32 s{t0}, s{t0}, {PART}")
a(f"v_add_u32 v{vOw0}, s{t0}, v{vL16}")
a(f"v_lshlrev_b32 v2, 2, v{vLane}")
a(f"v_add_u32 v{vOw1}, s{t0}, v2")
a(f"s_lshl_b32 s{t1}, s{sH}, 16")
a(f"s_lshl_b32 s{t2}, s{sC}, 13")
a(f"s_add_u32 s{sQoff}, s{t1}, s{t2}")
a(f"s_add_u32 s{sQoff}, s{sQoff}, {QA}")
a(f"s_getpc_b64 {sr(sSUB,2)}")
a.label("L_pc2")
a(f"s_add_u32 s{sSUB}, s{sSUB}, L_reduce-L_pc2")
a(f"s_addc_u32 s{sSUB+1}, s{sSUB+1}, 0")

def load_kv(isY):
    a(f"s_lshl_b32 s{t1}, s{sH}, 16")
    a(f"s_lshl_b32 s{t2}, s{sWave}, 13")
    a(f"s_add_u32 s{t1}, s{t1}, s{t2}")
    a(f"s_add_u32 s{t2}, s{t1}, {KA}")
    a(f"s_add_u32 s{t3}, s{t1}, {VA}")
    a(f"s_add_u32 s{t0}, s{t2}, 4096")
    a(f"s_add_u32 s{t1}, s{t3}, 4096")
    def ldK(kt):
        a(f"buffer_load_dwordx4 {vr(vK+4*kt,4)}, v{vL16}, {sr(sWS,4)}, s{t2 if kt < 4 else t0} offen offset:{(kt&3)*1024} sc1")
    if not isY: a(f"buffer_load_dwordx4 {vr(vQ,4)}, v{vL16}, {sr(sWS,4)}, s{sQoff} offen sc1")
    ldK(0)
    for kt in range(8):
        if kt == 1 and not isY:
            a(f"s_lshl_b32 s{t4}, s{sW4}, 11")
            a(f"s_add_u32 s{sQoff}, s{sQoff}, s{t4}")
            a(f"v_add_u32 v{vQa}, s{t4}, v{vL16}")
            for m in range(2):
                a(f"buffer_load_dwordx4 {vr(196+4*m,4)}, v{vL16}, {sr(sWS,4)}, s{sQoff} offen offset:{m*1024} sc1")
        a(f"s_mov_b64 exec, {sr(sVM,2)}")
        for m in range(2):
            a(f"buffer_load_dwordx4 {vr(vV+8*kt+4*m,4)}, v{vVld}, {sr(sWS,4)}, s{t3 if kt < 4 else t1} offen offset:{(kt&3)*1024+m*512} sc1")
        a("s_mov_b64 exec, -1")
        if kt < 7: ldK(kt+1)

def attn_loop(isY):
    L = "L_attnY" if isY else "L_attnX"
    a(f"s_mov_b32 s{sIt}, 0")
    a(f"s_mov_b32 s{sBm}, {0b0100 if isY else (1 | (1 << ALPHA_IT))}")
    lpstamp()
    a(".p2align 3")
    a.label(L)
    for n in range(16):
        par, kt = n >> 3, n & 7
        S = vS + 16*(n & 1); Sn = vS + 16*((n+1) & 1)
        O = vO + 16*par
        pk_ = (kt - 1) & 7
        Oo = vO + 16*(par ^ 1)
        Op = O if kt > 0 else Oo
        e = lambda i: a(f"v_exp_f32 v{S+i}, v{S+i}")
        c = lambda j: a(f"v_cvt_pk_bf16_f32 v{vP+j}, v{S+2*j}, v{S+2*j+1}")
        e(0); e(1)
        a(f"{M32} {vr(Op,16)}, {vr(vV+8*pk_+4,4)}, {vr(vP+4,4)}, {vr(Op,16)}")
        e(2); e(3); c(0); e(4); e(5); c(1); e(6); e(7); c(2)
        if kt == 7: a("s_waitcnt lgkmcnt(0)" if (isY or par) else "s_waitcnt vmcnt(0) lgkmcnt(0)")
        elif par == 0 and not isY: a(f"s_waitcnt vmcnt({3*(6-kt)+2+(2 if kt == 0 else 0)})")
        Qn = vQ + 4*par if kt < 7 else vQ + 4*(par ^ 1)
        a(f"{M32} {vr(Sn,16)}, {vr(vK+4*((kt+1)&7),4)}, {vr(Qn,4)}, 0")
        e(8); c(3); e(9); e(10)
        a(f"{M32} {vr(O,16)}, {vr(vV+8*kt,4)}, {vr(vP,4)}, {'0' if (kt == 0 and not isY) else vr(O,16)}")
        e(11); c(4)
        if kt == 1:
            a(f"ds_write_b128 v{vOw0}, {vr(Oo,4)}")
            a(f"ds_write_b128 v{vOw0}, {vr(Oo+4,4)} offset:1024")
            a(f"ds_write_b32 v{vOw1}, v{Oo+8} offset:2048")
        if kt == 4:
            a(f"ds_read_b128 {vr(vQ+4*(par^1),4)}, v{vQa} offset:{QL+1024*(par+1)}")
            if par: a(f"v_add_u32 v{vQa}, 2048, v{vQa}")
        if kt == 3 and isY:
            a(f"ds_read_b128 {vr(Oo,4)}, v{vOw0} offset:{PSLOT}")
            a(f"ds_read_b128 {vr(Oo+4,4)}, v{vOw0} offset:{PSLOT+1024}")
            a(f"ds_read_b32 v{Oo+8}, v{vOw1} offset:{PSLOT+2048}")
        e(12); e(13); c(5)
        if kt == 1:
            a(f"v_add_u32 v{vOw0}, s{sDelta}, v{vOw0}")
            a(f"v_add_u32 v{vOw1}, s{sDelta}, v{vOw1}")
            a(f"s_mov_b32 s{sDelta}, {PSLOT}")
        if kt == 2 and par == 0:
            a(f"s_bitcmp1_b32 s{sBm}, s{sIt}")
            a(f"s_cbranch_scc0 {L}_nb")
            if not isY:
                a(f"s_cmp_lg_u32 s{sIt}, 0")
                a(f"s_cbranch_scc1 {L}_nq")
                a(f"ds_write_b128 v{vQa}, {vr(196,4)} offset:{QL}")
                a(f"ds_write_b128 v{vQa}, {vr(200,4)} offset:{QL+1024}")
                a(f"v_mov_b32 v{vQa}, v{vL16}")
                a.label(f"{L}_nq")
            a("s_waitcnt lgkmcnt(0)")
            a("s_barrier")
            a.label(f"{L}_nb")
        e(14); e(15); c(6); c(7)
        if kt == 7: lpstamp()
    a(f"s_add_u32 s{sIt}, s{sIt}, 1")
    a(f"s_cmp_lg_u32 s{sIt}, 4")
    a(f"s_cbranch_scc1 {L}")
    a(f"{M32} {vr(vO+16,16)}, {vr(vV+8*7+4,4)}, {vr(vP+4,4)}, {vr(vO+16,16)}")
    a(f"ds_write_b128 v{vOw0}, {vr(vO+16,4)}")
    a(f"ds_write_b128 v{vOw0}, {vr(vO+20,4)} offset:1024")
    a(f"ds_write_b32 v{vOw1}, v{vO+24} offset:2048")
    a("s_waitcnt lgkmcnt(0)")

sWo = 40
def wo_dma():
    a(f"v_lshrrev_b32 v2, 2, v{vLane}")
    a(f"v_and_b32 v3, 3, v{vLane}")
    a(f"v_lshlrev_b32 v3, 4, v3")
    a(f"v_lshl_add_u32 v18, v2, 10, v3")
    a(f"s_cmp_ge_u32 s{sW4}, 2")
    a(f"s_cselect_b32 s{sWo}, s{sWOA}, s{sWOB}")
    a(f"s_cselect_b32 s{sWo+1}, s{sWOA+1}, s{sWOB+1}")
    a(f"s_mov_b32 s{sWo+2}, {512*512*2}")
    a(f"s_mov_b32 s{sWo+3}, 0x20000")
    a(f"s_and_b32 s{t0}, s{sW4}, 1")
    a(f"s_lshl_b32 s{t0}, s{t0}, 18")
    a(f"s_add_u32 s{t0}, s{t0}, s{sN0}")
    a(f"s_lshl_b32 s{t1}, s{sW4}, 14")
    a(f"s_add_u32 s{t1}, s{t1}, {WO}")
    a(f"s_mov_b32 s{t2}, 16")
    a.label(f"L_wo")
    a(f"s_mov_b32 m0, s{t1}")
    a(f"s_add_u32 s{t1}, s{t1}, 1024")
    a(f"buffer_load_dwordx4 v18, {sr(sWo,4)}, s{t0} offen lds")
    a(f"s_add_u32 s{t0}, s{t0}, 16384")
    a(f"s_sub_u32 s{t2}, s{t2}, 1")
    a(f"s_cmp_lg_u32 s{t2}, 0")
    a(f"s_cbranch_scc1 L_wo")

vWoA = 7
def wo_addr():
    a(f"v_lshrrev_b32 v3, 5, v{vLane}")
    a(f"v_bfe_u32 v18, v{vLane}, 2, 2")
    a(f"v_lshl_add_u32 v18, v3, 2, v18")
    a(f"v_lshlrev_b32 v18, 6, v18")
    a(f"v_bfe_u32 v19, v{vLane}, 4, 1")
    a(f"v_lshl_add_u32 v18, v19, 5, v18")
    a(f"v_and_b32 v19, 3, v{vLane}")
    a(f"v_lshl_add_u32 v18, v19, 3, v18")
    a(f"v_add_u32 v{vWoA}, {WO}, v18")

vFB, vFA, vAccA, vW3, vG, vAccB = 20, 148, 212, 228, 240, 148
def loadn(dst, n, soff):
    for i in range(n):
        a(f"buffer_load_dwordx4 {vr(dst+4*i,4)}, v{vL16}, {sr(sWS,4)}, s{soff} offen offset:{(i&3)*1024} sc1")
        if (i & 3) == 3 and i < n-1: a(f"s_add_u32 s{soff}, s{soff}, 4096")
def proj(acc, frag, n, vaddr, pre=None):
    def rd(i):
        for sec in range(2):
            a(f"ds_read_b64_tr_b16 {vr(vW3+4*(i%3)+2*sec,2)}, v{vaddr} offset:{i*1024+sec*512}")
    rd(0); rd(1)
    if pre: pre()
    for i in range(n):
        if i + 2 < n: rd(i+2)
        a(f"s_waitcnt lgkmcnt({2*min(2, n-1-i)})")
        a(f"{M32} {vr(acc,16)}, {vr(vW3+4*(i%3),4)}, {vr(frag+4*i,4)}, {'0' if i == 0 else vr(acc,16)}")
def load_g(dst, stile_plus):
    a(f"s_lshl_b32 s{t1}, s{stile_plus}, 7")
    a(f"s_add_u32 s{t1}, s{t1}, {GW}")
    a(f"buffer_load_dword v{dst}, v14, {sr(sWS,4)}, s{t1} offen sc1")

def tail_addr():
    a(f"s_lshr_b32 s{sCg}, s{sWave}, 1")
    a(f"s_lshl_b32 s{t0}, s{sCg}, 13")
    a(f"s_add_u32 s{t0}, s{t0}, 32768")
    a(f"v_add_u32 v12, s{t0}, v{vWoA}")
    a(f"s_add_u32 s{t0}, s{sTe}, 4")
    a(f"s_lshl_b32 s{t0}, s{t0}, 5")
    a(f"s_lshl_b32 s{t1}, s{sCg}, 3")
    a(f"s_add_u32 s{sRt}, s{t0}, s{t1}")
    a(f"s_lshl_b32 s{t0}, s{sRt}, 3")
    a(f"s_add_u32 s{t0}, s{t0}, {FLGO}")
    a(f"v_and_b32 v2, 7, v{vLane}")
    a(f"v_lshl_add_u32 v15, v2, 3, s{t0}")
    a(f"s_lshl_b32 s{sRt}, s{sRt}, 10")
    a(f"s_add_u32 s{sRt}, s{sRt}, {OA}")
    a(f"v_and_b32 v2, 31, v{vLane}")
    a(f"v_mul_u32_u24 v2, 144, v2")
    a(f"v_lshrrev_b32 v3, 5, v{vLane}")
    a(f"v_lshl_add_u32 v2, v3, 4, v2")
    a(f"s_and_b32 s{t0}, s{sWave}, 1")
    a(f"s_lshl_b32 s{t0}, s{t0}, 2")
    a(f"s_add_u32 s{t0}, s{t0}, s{sCg}")
    a(f"s_mul_i32 s{t0}, s{t0}, 4608")
    a(f"s_add_u32 s{t0}, s{t0}, {RED}")
    a(f"v_add_u32 v8, s{t0}, v2")
    a(f"v_lshrrev_b32 v2, 3, v{vLane}")
    a(f"s_lshl_b32 s{t0}, s{sCg}, 3")
    a(f"v_add_u32 v2, s{t0}, v2")
    a(f"v_and_b32 v3, 7, v{vLane}")
    a(f"v_mul_u32_u24 v9, 144, v2")
    a(f"v_lshl_add_u32 v9, v3, 4, v9")
    a(f"s_and_b32 s{t0}, s{sWave}, 1")
    a(f"s_mul_i32 s{t0}, s{t0}, {4*4608}")
    a(f"v_add_u32 v9, s{t0}, v9")
    a(f"v_lshlrev_b32 v11, 10, v2")
    a(f"v_lshl_add_u32 v11, v3, 3, v11")
def tail_w():
    for i in range(8):
        for sec in range(2):
            a(f"ds_read_b64_tr_b16 {vr(100+4*i+2*sec,2)}, v12 offset:{i*1024+sec*512}")
        if i == 3: a("s_waitcnt lgkmcnt(4)")

a(f"s_cmp_ge_u32 s{sWave}, 4")
a("s_cbranch_scc1 L_Y")
a(f"v_add_u32 v{vOw0}, {PSLOT}, v{vOw0}")
a(f"v_add_u32 v{vOw1}, {PSLOT}, v{vOw1}")
a(f"s_mov_b32 s{sDelta}, {(-PSLOT) & 0xffffffff}")
stamp(3)
poll(vPoll, vPair)
stamp(4)
lpstamp()
load_kv(False)
a("s_waitcnt vmcnt(25)")
a(f"{M32} {vr(vS,16)}, {vr(vK,4)}, {vr(vQ,4)}, 0")
a("s_nop 7")
a("s_nop 1")
attn_loop(False)
a("s_barrier")
stamp(5)
a("s_setprio 1")
a(f"s_lshr_b32 s{sCg}, s{sWave}, 1")
a(f"s_lshl_b32 s{sT}, s{sCg}, 2")
a(f"s_add_u32 s{sT}, s{sT}, s{sTe}")
a(f"s_lshl_b32 s{t0}, s{sT}, 8")
a(f"s_add_u32 s{t0}, s{t0}, {FLGOB}")
a(f"v_and_b32 v2, 31, v{vLane}")
a(f"v_lshl_add_u32 v{vPoll}, v2, 3, s{t0}")
a(f"v_lshlrev_b32 v14, 2, v2")
poll(vPoll, vPair)
a(f"s_lshl_b32 s{t0}, s{sT}, 15")
a(f"s_add_u32 s{t0}, s{t0}, {OB}")
loadn(vFB, 32, t0)
load_g(vG, sTe)
load_g(vG+1, sT)
a(f"s_add_u32 s{t0}, s{sTe}, 4")
load_g(vG+2, t0)
wo_addr()
tail_addr()
a(f"s_lshl_b32 s{t0}, s{sCg}, 14")
a(f"s_add_u32 s{t0}, s{t0}, 32768")
a(f"v_add_u32 v13, s{t0}, v{vWoA}")
a(f"s_lshl_b32 s{sT}, s{sTe}, 5")
a(f"s_lshl_b32 s{t0}, s{sCg}, 4")
a(f"s_add_u32 s{sT}, s{sT}, s{t0}")
a(f"s_lshl_b32 s{t0}, s{sT}, 3")
a(f"s_add_u32 s{t0}, s{t0}, {FLGO}")
a(f"v_and_b32 v2, 15, v{vLane}")
a(f"v_lshl_add_u32 v{vPoll}, v2, 3, s{t0}")
a(f"s_lshl_b32 s{sT}, s{sT}, 10")
a(f"s_add_u32 s{sT}, s{sT}, {OA}")
a(f"s_mov_b32 s{sTq}, s{sWave}")
stamp(6)
a("s_barrier")
a(f"s_swappc_b64 {sr(sRET,2)}, {sr(sSUB,2)}")
post_flag(t0)
poll(vPoll, vPair)
loadn(vFA, 16, sT)
a(f"v_sub_f32 v{vG+1}, 1.0, v{vG+1}")
a(f"s_and_b32 s{t0}, s{sWave}, 1")
a(f"s_lshl_b32 s{t0}, s{t0}, 12")
a(f"v_add_u32 v10, s{t0}, v{vL16}")
a(f"v_and_b32 v2, 31, v{vLane}")
a(f"v_lshlrev_b32 v2, 10, v2")
a(f"v_lshrrev_b32 v3, 5, v{vLane}")
a(f"v_lshl_add_u32 v16, v3, 4, v2")
a(f"s_lshl_b32 s{sT}, s{sTe}, 15")
a(f"s_add_u32 s{sT}, s{sT}, s{sN0}")
def pre_delta():
    a("s_waitcnt vmcnt(0)")
    stamp(7)
    a("s_barrier")
    stamp(8)
proj(vAccA, vFA, 16, 13, pre_delta)
a(f"s_cmp_ge_u32 s{sWave}, 2")
a("s_cbranch_scc0 L_Xnw")
a("s_nop 9")
for j in range(4): a(f"ds_write_b128 v10, {vr(vAccA+4*j,4)} offset:{QL+j*1024}")
a.label("L_Xnw")
def pre_e():
    a("s_waitcnt lgkmcnt(4)")
    a("s_barrier")
proj(vAccB, vFB, 32, vWoA, pre_e)
a(f"s_cmp_ge_u32 s{sWave}, 2")
a("s_cbranch_scc0 L_Xearly")
tail_w()
for i in range(8): pk("mul", vAccB+2*i, vr(vAccB+2*i,2), vr(vG,2), None, "op_sel:[0,1] op_sel_hi:[1,1]")
a("s_branch L_tail")
a.label("L_Xearly")
for j in range(4): a(f"ds_read_b128 {vr(164+4*j,4)}, v10 offset:{QL+j*1024}")
a("s_nop 6")
for i in range(8): pk("mul", vAccB+2*i, vr(vAccB+2*i,2), vr(vG,2), None, "op_sel:[0,1] op_sel_hi:[1,1]")
a("s_waitcnt lgkmcnt(0)")
tail_w()
for i in range(8): pk("add", vAccA+2*i, vr(vAccA+2*i,2), vr(164+2*i,2))
for i in range(8): pk("fma", vAccA+2*i, vr(vAccA+2*i,2), vr(vG,2), vr(vAccB+2*i,2), "op_sel:[0,0,0] op_sel_hi:[1,0,1]")
cvt8(164, vAccA)
for i in range(16): a(f"v_mov_b32 v{vAccB+i}, 0")
for jj in range(2):
    a(f"v_permlane32_swap_b32 v{164+4*jj}, v{164+4*jj+2}")
    a(f"v_permlane32_swap_b32 v{164+4*jj+1}, v{164+4*jj+3}")
for jj in range(2):
    a(f"buffer_store_dwordx4 {vr(164+4*jj,4)}, v16, {sr(sOUT,4)}, s{sT} offen offset:{jj*32}")
a("s_branch L_tail")

a.label("L_Y")
a("s_waitcnt lgkmcnt(0)")
a("s_barrier")
stamp(3)
a("s_setprio 1")
a(f"s_cmp_eq_u32 s{sType}, 0")
a("s_cbranch_scc1 L_Yphi")
a(f"s_lshl_b32 s{t0}, s{sW4}, 14")
a(f"s_add_u32 s{t0}, s{t0}, {WO}")
a(f"v_add_u32 v3, s{t0}, v{vL16}")
for rt in range(4):
    for q in range(4):
        a(f"ds_read_b128 {vr(116+16*rt+4*q,4)}, v3 offset:{rt*4096+q*1024}")
    if rt == 2: a("s_waitcnt lgkmcnt(8)")
a(f"s_lshl_b32 s{t0}, s{sHq}, 2")
a(f"s_add_u32 s{t0}, s{t0}, s{sW4}")
a(f"s_lshl_b32 s{t0}, s{t0}, 4")
a(f"s_add_u32 s{t0}, s{t0}, s{sRb}")
a(f"s_lshl_b32 s{t2}, s{t0}, 12")
a(f"s_add_u32 s{t2}, s{t2}, {KVP}")
a(f"s_lshl_b32 s{t0}, s{t0}, 3")
a(f"s_add_u32 s{t0}, s{t0}, {FLGK}")
a("s_waitcnt lgkmcnt(0)")
for i in range(16): pk("add", 116+2*i, vr(116+2*i,2), vr(148+2*i,2))
for i in range(8): pk("add", 116+2*i, vr(116+2*i,2), vr(132+2*i,2))
for q in range(4):
    a(f"buffer_store_dwordx4 {vr(116+4*q,4)}, v{vL16}, {sr(sWS,4)}, s{t2} offen offset:{q*1024} sc1")
post_flag(t0)
a("s_branch L_Ypub")
a.label("L_Yphi")
a(f"s_lshl_b32 s{t0}, s{sW4}, 14")
a(f"s_add_u32 s{t0}, s{t0}, {WO}")
a(f"v_add_u32 v3, s{t0}, v{vL16}")
for q in range(8): a(f"ds_read_b128 {vr(116+4*q,4)}, v3 offset:{q*1024}")
a(f"s_lshl_b32 s{t1}, s{sHq}, 19")
a(f"s_lshl_b32 s{t2}, s{sT}, 11")
a(f"s_add_u32 s{t1}, s{t1}, s{t2}")
a(f"s_add_u32 s{t1}, s{t1}, {PHQ}")
a(f"s_lshl_b32 s{t0}, s{sHq}, 6")
a(f"s_add_u32 s{t0}, s{t0}, s{sT}")
a(f"s_lshl_b32 s{t0}, s{t0}, 3")
a(f"s_add_u32 s{t0}, s{t0}, {FLGP}")
a("s_waitcnt lgkmcnt(0)")
for q in range(8):
    a(f"buffer_store_dwordx4 {vr(116+4*q,4)}, v{vL16}, {sr(sWS,4)}, s{t1} offen offset:{(q&1)*1024} sc1")
    if q & 1: a(f"s_add_u32 s{t1}, s{t1}, 131072")
post_flag(t0)
a.label("L_Ypub")
poll(vPoll, vPair)
load_kv(True)
wo_dma()
a(f"s_lshl_b32 s{t0}, s{sH}, 7")
a(f"s_add_u32 s{t0}, s{t0}, {FLGK}")
a(f"v_lshlrev_b32 v2, 3, v{vLane}")
a(f"v_add_u32 v2, s{t0}, v2")
a(f"s_lshl_b32 s{sT}, s{sC}, 3")
a(f"s_lshl_b32 s{t0}, s{sW4}, 1")
a(f"s_add_u32 s{sT}, s{sT}, s{t0}")
a(f"s_lshl_b32 s{t0}, s{sHq2}, 6")
a(f"s_add_u32 s{t0}, s{t0}, s{sT}")
a(f"s_lshl_b32 s{t0}, s{t0}, 3")
a(f"s_add_u32 s{t0}, s{t0}, {FLGP}")
a(f"v_and_b32 v3, 1, v{vLane}")
a(f"v_lshl_add_u32 v3, v3, 3, s{t0}")
a(f"v_cmp_gt_u32 s[{t0}:{t1}], 16, v{vLane}")
a(f"v_cndmask_b32 v{vPoll}, v3, v2, s[{t0}:{t1}]")
poll(vPoll, vPair)
stamp(4)
vKV, vPQ = 116, 196
a(f"s_lshl_b32 s{t0}, s{sH}, 16")
a(f"s_lshl_b32 s{t1}, s{sW4}, 10")
a(f"s_add_u32 s{t0}, s{t0}, s{t1}")
a(f"s_add_u32 s{t0}, s{t0}, {KVP}")
for rb in range(16):
    a(f"buffer_load_dwordx4 {vr(vKV+4*rb,4)}, v{vL16}, {sr(sWS,4)}, s{t0} offen sc1")
    if rb < 15: a(f"s_add_u32 s{t0}, s{t0}, 4096")
a(f"s_lshl_b32 s{t0}, s{sH}, 17")
a(f"s_lshl_b32 s{t1}, s{sT}, 11")
a(f"s_add_u32 s{t0}, s{t0}, s{t1}")
a(f"s_add_u32 s{t0}, s{t0}, {PHQ}")
for i in range(4):
    a(f"buffer_load_dwordx4 {vr(vPQ+4*i,4)}, v{vL16}, {sr(sWS,4)}, s{t0} offen offset:{i*1024} sc1")
a(f"s_lshr_b32 s{t0}, s{sW4}, 1")
a(f"s_lshl_b32 s{t0}, s{t0}, 10")
a(f"s_and_b32 s{t1}, s{sW4}, 1")
a(f"s_lshl_b32 s{t1}, s{t1}, 3")
a(f"s_add_u32 s{t0}, s{t0}, s{t1}")
a(f"s_add_u32 s{t0}, s{t0}, {KVX}")
a(f"v_add_u32 v2, s{t0}, v{vL16}")
a("s_waitcnt vmcnt(4)")
for st in (32, 16, 8, 4):
    for i in range(st//2): pk("add", vKV+2*i, vr(vKV+2*i,2), vr(vKV+st+2*i,2))
cvt8(vKV+4, vKV, 2)
a(f"ds_write_b64 v2, {vr(vKV+4,2)}")
a(f"v_add_u32 v18, {KVX}, v{vL16}")
a("s_waitcnt lgkmcnt(0)")
stamp(5)
a("s_barrier")
a(f"ds_read_b128 {vr(vKV,4)}, v18")
a(f"ds_read_b128 {vr(vKV+4,4)}, v18 offset:1024")
a(f"s_lshl_b32 s{t0}, s{sT}, 5")
a(f"s_add_u32 s{t0}, s{t0}, s{sH}")
a(f"s_lshl_b32 s{t3}, s{t0}, 10")
a(f"s_add_u32 s{t3}, s{t3}, {OB}")
a(f"s_add_u32 s{t4}, s{t3}, 32768")
a(f"s_lshl_b32 s{sTq}, s{t0}, 3")
a(f"s_add_u32 s{sTq}, s{sTq}, {FLGOB}")
a("s_waitcnt vmcnt(0) lgkmcnt(0)")
for u in range(2):
    D = 124 + 16*u
    a(f"{M32} {vr(D,16)}, {vr(vKV,4)}, {vr(vPQ+8*u,4)}, 0")
    a(f"{M32} {vr(D,16)}, {vr(vKV+4,4)}, {vr(vPQ+8*u+4,4)}, {vr(D,16)}")
for u in range(2):
    D = 124 + 16*u
    a(f"v_add_f32 v{D+8}, {f32(1e-6)}, v{D+8}")
    a(f"v_rcp_f32 v{D+8}, v{D+8}")
    for i in range(4): pk("mul", D+2*i, vr(D+2*i,2), vr(D+8,2), None, "op_sel:[0,0] op_sel_hi:[1,0]")
    cvt8(D+12, D, 4)
    a(f"buffer_store_dwordx4 {vr(D+12,4)}, v{vL16}, {sr(sWS,4)}, s{t3 if u == 0 else t4} offen sc1")
post_flag(sTq, 256)
wo_addr()
tail_addr()
a(f"v_and_b32 v2, 31, v{vLane}")
a(f"v_lshlrev_b32 v14, 2, v2")
a(f"ds_read_b128 {vr(vQ,4)}, v{vL16} offset:{QL}")
a(f"v_mov_b32 v{vQa}, v{vL16}")
a(f"v_mov_b32 v2, v{vOw0}")
a(f"v_mov_b32 v3, v{vOw1}")
a(f"s_mul_i32 s{t0}, s{sW4}, 2304")
a(f"s_sub_u32 s{sDelta}, s{t0}, {SPARE-PART}")
a(f"v_subrev_u32 v{vOw0}, s{sDelta}, v{vOw0}")
a(f"v_subrev_u32 v{vOw1}, s{sDelta}, v{vOw1}")
a("s_waitcnt lgkmcnt(0)")
a(f"{M32} {vr(vS,16)}, {vr(vK,4)}, {vr(vQ,4)}, 0")
a("s_waitcnt vmcnt(0)")
stamp(6)
a("s_setprio 0")
a("s_barrier")
lpstamp()
a(f"ds_read_b128 {vr(vO,4)}, v2")
a(f"ds_read_b128 {vr(vO+4,4)}, v2 offset:1024")
a(f"ds_read_b32 v{vO+8}, v3 offset:2048")
a("s_waitcnt lgkmcnt(0)")
attn_loop(True)
a(f"s_mov_b32 s{sTq}, s{sWave}")
stamp(7)
a("s_setprio 2")
a("s_barrier")
stamp(8)
a(f"s_swappc_b64 {sr(sRET,2)}, {sr(sSUB,2)}")
a("s_barrier")
post_flag(t0)
a("s_setprio 0")
a(f"s_add_u32 s{t0}, s{sTe}, 4")
load_g(vG+2, t0)
tail_w()
for i in range(16): a(f"v_mov_b32 v{vAccB+i}, 0")

a.label("L_tail")
poll(15, vPair)
stamp(9)
loadn(20, 8, sRt)
a("s_waitcnt lgkmcnt(0)")
for i in range(8):
    a(f"s_waitcnt vmcnt({7-i})")
    a(f"{M32} {vr(52,16)}, {vr(100+4*i,4)}, {vr(20+4*i,4)}, {'0' if i == 0 else vr(52,16)}")
a(f"s_add_u32 s{t0}, s{sTe}, 4")
a(f"s_lshl_b32 s{t0}, s{t0}, 15")
a(f"s_add_u32 s{t0}, s{t0}, s{sN0}")
for j in range(4):
    for i in range(2): pk("fma", 52+4*j+2*i, vr(52+4*j+2*i,2), vr(vG+2,2), vr(vAccB+4*j+2*i,2), "op_sel:[0,0,0] op_sel_hi:[1,0,1]")
    a(f"ds_write_b128 v8, {vr(52+4*j,4)} offset:{j*32}")
a("s_waitcnt lgkmcnt(0)")
a("s_barrier")
stamp(10)
for k in range(4): a(f"ds_read_b128 {vr(20+4*k,4)}, v9 offset:{RED+k*4608}")
a("s_waitcnt lgkmcnt(0)")
for i in range(4): pk("add", 20+2*i, vr(20+2*i,2), vr(28+2*i,2))
for i in range(2): pk("add", 20+2*i, vr(20+2*i,2), vr(24+2*i,2))
cvt8(24, 20, 2)
a(f"buffer_store_dwordx2 {vr(24,2)}, v11, {sr(sOUT,4)}, s{t0} offen")
a(f"s_or_b32 s{t0}, s2, s{sWave}")
a(f"s_cmp_lg_u32 s{t0}, 0")
a("s_cbranch_scc1 L_noepoch")
a("s_mov_b64 exec, 1")
a(f"buffer_store_dwordx2 {vr(vTAG,2)}, v{vZERO}, {sr(sWS,4)}, 0 offen sc1")
a("s_mov_b64 exec, -1")
a.label("L_noepoch")
if DEBUG_TS:
    a("s_waitcnt vmcnt(0)")
    stamp(11)
    a(f"s_lshl_b32 s{t0}, s2, 3")
    a(f"s_add_u32 s{t0}, s{t0}, s{sWave}")
    a(f"s_lshl_b32 s{t0}, s{t0}, 6")
    a(f"s_add_u32 s{t0}, s{t0}, {TS}")
    for i in range(12): a(f"v_mov_b32 v{20+i}, s{sTS+i}")
    a("s_mov_b64 exec, 1")
    for i in range(3):
        a(f"buffer_store_dwordx4 {vr(20+4*i,4)}, v{vZERO}, {sr(sWS,4)}, s{t0} offen offset:{16*i}")
if opt("spin", 0):
    a(f"s_memtime s[{t0}:{t1}]")
    a("s_waitcnt lgkmcnt(0)")
    a.label("L_spin")
    a(f"s_memtime s[{t2}:{t3}]")
    a("s_waitcnt lgkmcnt(0)")
    a(f"s_sub_u32 s{t2}, s{t2}, s{t0}")
    a(f"s_cmp_lt_u32 s{t2}, {opt('spin', 0)}")
    a("s_cbranch_scc1 L_spin")
if opt("until", 0):
    a.label("L_spin2")
    a(f"s_memrealtime s[{t2}:{t3}]")
    a("s_waitcnt lgkmcnt(0)")
    a(f"s_sub_u32 s{t2}, s{t2}, s100")
    a(f"s_cmp_lt_u32 s{t2}, {opt('until', 0)}")
    a("s_cbranch_scc1 L_spin2")
a.label("L_end")
a("s_endpgm")

vR = 148
a.label("L_reduce")
a(f"s_mul_i32 s{t0}, s{sTq}, {PSLOT}")
a(f"s_add_u32 s{t0}, s{t0}, {PART}")
a(f"v_add_u32 v2, s{t0}, v{vL16}")
a(f"v_lshlrev_b32 v3, 2, v{vLane}")
a(f"v_add_u32 v3, s{t0}, v3")
for p in range(4):
    a(f"ds_read_b128 {vr(vR+12*p,4)}, v2 offset:{p*2304}")
    a(f"ds_read_b128 {vr(vR+12*p+4,4)}, v2 offset:{p*2304+1024}")
    a(f"ds_read_b32 v{vR+12*p+8}, v3 offset:{p*2304+2048}")
a(f"s_lshl_b32 s{t5}, s{sC}, 3")
a(f"s_add_u32 s{t5}, s{t5}, s{sTq}")
a(f"s_mov_b32 s{t2}, {f32(2.0**40)}")
a(f"s_mov_b32 s{t3}, {f32(2.0**120)}")
a("s_waitcnt lgkmcnt(6)")
for i in range(4): pk("add", vR+2*i, vr(vR+2*i,2), vr(vR+12+2*i,2))
a(f"v_add_f32 v{vR+8}, v{vR+8}, v{vR+20}")
a("s_waitcnt lgkmcnt(0)")
for i in range(4): pk("add", vR+24+2*i, vr(vR+24+2*i,2), vr(vR+36+2*i,2))
a(f"v_add_f32 v{vR+32}, v{vR+32}, v{vR+44}")
a(f"v_add_f32 v{vR+8}, v{vR+8}, v{vR+32}")
for i in range(4): pk("add", vR+2*i, vr(vR+2*i,2), vr(vR+24+2*i,2))
a(f"v_cmp_le_f32 vcc, 1.0, v{vR+8}")
a(f"v_cmp_ge_f32 s[{t0}:{t1}], s{t2}, v{vR+8}")
a(f"v_add_f32 v2, abs(v{vR}), abs(v{vR+1})")
a(f"v_add_f32 v3, abs(v{vR+2}), abs(v{vR+3})")
for i in range(4, 8): a(f"v_add_f32 v{2+(i&1)}, v{2+(i&1)}, abs(v{vR+i})")
a(f"s_and_b64 vcc, vcc, s[{t0}:{t1}]")
a(f"v_add_f32 v2, v2, v3")
a(f"v_cmp_ge_f32 s[{t0}:{t1}], s{t3}, v2")
a(f"s_and_b64 vcc, vcc, s[{t0}:{t1}]")
a(f"s_cmp_eq_u64 vcc, -1")
a("s_cbranch_scc1 L_slow" if FORCE_SLOW else "s_cbranch_scc0 L_slow")
a.label("L_norm")
a(f"v_rcp_f32 v{vR+8}, v{vR+8}")
a(f"s_lshl_b32 s{t0}, s{t5}, 5")
a(f"s_add_u32 s{t0}, s{t0}, s{sH}")
a(f"s_lshl_b32 s{t1}, s{t0}, 10")
a(f"s_add_u32 s{t2}, s{t1}, {OA}")
for i in range(4): pk("mul", vR+2*i, vr(vR+2*i,2), vr(vR+8,2), None, "op_sel:[0,0] op_sel_hi:[1,0]")
cvt8(vR+12, vR, 4)
a(f"buffer_store_dwordx4 {vr(vR+12,4)}, v{vL16}, {sr(sWS,4)}, s{t2} offen sc1")
a(f"s_lshl_b32 s{t0}, s{t0}, 3")
a(f"s_add_u32 s{t0}, s{t0}, {FLGO}")
a(f"s_setpc_b64 {sr(sRET,2)}")

a.label("L_slow")
sQ_, sK_, sV_, sS_, sP_, sO_, sM_, sm_ = 160, 164, 168, 176, 192, 200, 216, 232
a(f"s_lshl_b32 s{t0}, s{sH}, 16")
a(f"s_lshl_b32 s{t1}, s{t5}, 10")
a(f"s_add_u32 s{t1}, s{t1}, s{t0}")
a(f"s_add_u32 s{t1}, s{t1}, {QA}")
a(f"buffer_load_dwordx4 {vr(sQ_,4)}, v{vL16}, {sr(sWS,4)}, s{t1} offen sc1")
a(f"s_add_u32 s{t1}, s{t0}, {KA}")
a(f"s_mov_b32 s{t2}, 64")
a(f"v_mov_b32 v{sm_}, 0xff7fffff")
a.label("L_slow1")
a(f"buffer_load_dwordx4 {vr(sK_,4)}, v{vL16}, {sr(sWS,4)}, s{t1} offen sc1")
a("s_waitcnt vmcnt(0)")
a(f"{M32} {vr(sS_,16)}, {vr(sK_,4)}, {vr(sQ_,4)}, 0")
for i in range(8): a(f"v_max3_f32 v{sm_}, v{sm_}, v{sS_+2*i}, v{sS_+2*i+1}")
a(f"s_add_u32 s{t1}, s{t1}, 1024")
a(f"s_sub_u32 s{t2}, s{t2}, 1")
a(f"s_cmp_lg_u32 s{t2}, 0")
a("s_cbranch_scc1 L_slow1")
a(f"v_mov_b32 v{sm_+1}, v{sm_}")
a(f"v_permlane32_swap_b32 v{sm_}, v{sm_+1}")
a(f"v_max_f32 v{sm_}, v{sm_}, v{sm_+1}")
for i in range(16): a(f"v_sub_f32 v{sM_+i}, 0, v{sm_}")
for i in range(16): a(f"v_mov_b32 v{sO_+i}, 0")
for i in range(8): a(f"v_mov_b32 v{sV_+i}, 0x3f803f80")
a(f"s_add_u32 s{t1}, s{t0}, {KA}")
a(f"s_add_u32 s{t3}, s{t0}, {VA}")
a(f"s_mov_b32 s{t2}, 64")
a.label("L_slow2")
a(f"buffer_load_dwordx4 {vr(sK_,4)}, v{vL16}, {sr(sWS,4)}, s{t1} offen sc1")
a(f"s_mov_b64 exec, {sr(sVM,2)}")
a(f"buffer_load_dwordx4 {vr(sV_,4)}, v{vVld}, {sr(sWS,4)}, s{t3} offen sc1")
a(f"buffer_load_dwordx4 {vr(sV_+4,4)}, v{vVld}, {sr(sWS,4)}, s{t3} offen offset:512 sc1")
a("s_mov_b64 exec, -1")
a("s_waitcnt vmcnt(0)")
a(f"{M32} {vr(sS_,16)}, {vr(sK_,4)}, {vr(sQ_,4)}, {vr(sM_,16)}")
for i in range(16): a(f"v_exp_f32 v{sS_+i}, v{sS_+i}")
cvt8(sP_, sS_)
a(f"{M32} {vr(sO_,16)}, {vr(sV_,4)}, {vr(sP_,4)}, {vr(sO_,16)}")
a(f"{M32} {vr(sO_,16)}, {vr(sV_+4,4)}, {vr(sP_+4,4)}, {vr(sO_,16)}")
a(f"s_add_u32 s{t1}, s{t1}, 1024")
a(f"s_add_u32 s{t3}, s{t3}, 1024")
a(f"s_sub_u32 s{t2}, s{t2}, 1")
a("s_nop 7")
a(f"s_cmp_lg_u32 s{t2}, 0")
a("s_cbranch_scc1 L_slow2")
for i in range(9): a(f"v_mov_b32 v{vR+i}, v{sO_+i}")
a("s_branch L_norm")
a.label("L_codeend_all")

assert SPARE + 2304 <= 163840
body, nn = a.finish(verbose="-v" in sys.argv)
body = body.replace("L_slow:", "L_codeend:\nL_slow:")
hdr = open("cdna_kernels/" + NAME + ".s.ref").read().split("; Override launch")[0]
text = hdr + f"""; @launch grid=(256,1,1) block=(512,1,1) lds=163840
.amdgcn_target "amdgcn-amd-amdhsa--gfx950"
.text
.globl {NAME}_kernel
.p2align 8
.type {NAME}_kernel,@function
{NAME}_kernel:
{body}
.section .rodata,"a"
.p2align 6
.amdhsa_kernel {NAME}_kernel
  .amdhsa_next_free_vgpr 256
  .amdhsa_next_free_sgpr 102
  .amdhsa_accum_offset 256
  .amdhsa_group_segment_fixed_size 0
  .amdhsa_kernarg_size 88
  .amdhsa_user_sgpr_count 2
  .amdhsa_user_sgpr_kernarg_segment_ptr 1
  .amdhsa_system_sgpr_workgroup_id_x 1
.end_amdhsa_kernel
"""
out = [x for x in sys.argv[1:] if not x.startswith("-")]
path = out[0] if out else "cdna_kernels/" + NAME + ".s"
open(path, "w").write(text)
print("wrote", path, "nops inserted:", nn)
```

```python
import sys, struct
from asmlib import *

NAME = "gated_mix__mha_block__linear_kernel_hedgehog__prompt"
def opt(name, default):
    for x in sys.argv:
        if x.startswith(f"--{name}="): return int(x.split("=")[1])
    return default
DEBUG_TS = "--ts" in sys.argv
P1TS = "--p1" in sys.argv
LPTS = "--lp" in sys.argv
FORCE_SLOW = "--force-slow" in sys.argv
CODEPF = opt("codepf", 1)
PUBN = opt("pubn", 4)
GA = opt("ga", 3)
TOUCH2 = opt("touch2", 1)
MAP84 = opt("map84", 1)
PRO = opt("pro", 6)
DD = opt("dd", 5)
FLAG_AT = opt("flagat", 86)
ALPHA_T = opt("alpha", 6)

EPOCH = 0
FLGA = 0x1000; FLGP = 0x5000; FLGK = 0x7000; FLGO = 0x9000; FLGOB = 0xD000; GW = 0x20000
QA = 0x100000; KA = 0x300000; VA = 0x500000; PHQ = 0x700000; KVP = 0xB00000
OA = 0xD00000; OB = 0xF00000; TS = 0x1200000
WS_SIZE = 0x1400000
EX = 0; KVX = 8192; PHIS = 16384; PART = 24576; PSLOT = 9216; WO = 98304
RED = PART
def wpos(p): return (p + 2) % 6

def f32(x): return "0x%08x" % struct.unpack("<I", struct.pack("<f", x))[0]
LOG2E = 1.4426950408889634
M32 = "v_mfma_f32_32x32x16_bf16"

sVM = 4
sRET = 6; sSUB = 8
sL2E2 = 10
sQS = 12
sTe, sN0, sW4, sTq = 14, 15, 16, 17
sKs, sXb, sWb, sW2off, sFl, sPub = 18, 19, 20, 21, 22, 23
sTAG = 26
sX, sWA, sWB, sWo, sWS, sPHI, sOUT, sWOA, sWOB, sG = 28, 32, 36, 40, 44, 48, 52, 56, 60, 64
sWave, sHq, sType, sRb, sRt, sCg, sH, sC, sT, sHa = 68, 69, 70, 71, 72, 73, 74, 75, 76, 77
t0, t1, t2, t3, t4, t5 = 78, 79, 80, 81, 82, 83
sXoff, sWoff, sLdsX, sLdsW = 84, 85, 86, 87
sCnt, sHq2 = 88, 89
sTS = 90
sL2E = sL2E2

a = Asm()
def tsop(): return 's_memtime' if '--cyc' in sys.argv else 's_memrealtime'
def stamp(i, mode=0):
    cur = 1 if P1TS else (2 if LPTS else 0)
    if not DEBUG_TS or (mode != cur and i not in (0, 11)): return
    a(f"{tsop()} s[24:25]")
    a("s_waitcnt lgkmcnt(0)")
    a(f"s_mov_b32 s{sTS+i}, s24")

uid = [0]
def poll(vaddr):
    n = uid[0]; uid[0] += 1
    a(f"s_mov_b32 s{sCnt}, 0x100000")
    a.label(f"L_poll{n}")
    a(f"buffer_load_dwordx2 {vr(vPair,2)}, v{vaddr}, {sr(sWS,4)}, 0 offen sc1")
    a("s_waitcnt vmcnt(0)")
    a(f"v_cmp_ne_u64 vcc, {sr(sTAG,2)}, {vr(vPair,2)}")
    a(f"s_cmp_eq_u64 vcc, 0")
    a(f"s_cbranch_scc1 L_polld{n}")
    a(f"s_sub_u32 s{sCnt}, s{sCnt}, 1")
    a(f"s_cmp_eq_u32 s{sCnt}, 0")
    a(f"s_cbranch_scc1 L_polld{n}")
    a("s_sleep 1")
    a(f"s_branch L_poll{n}")
    a.label(f"L_polld{n}")

vTAG = 250; vZERO = 252; vPair = 248; vPoll = 253
def flag_ops(soff, extra=None):
    l = ["s_waitcnt vmcnt(0)", "s_mov_b64 exec, 1",
         f"buffer_store_dwordx2 {vr(vTAG,2)}, v{vZERO}, {sr(sWS,4)}, s{soff} offen sc1"]
    if extra is not None:
        l.append(f"buffer_store_dwordx2 {vr(vTAG,2)}, v{vZERO}, {sr(sWS,4)}, s{soff} offen offset:{extra} sc1")
    l.append("s_mov_b64 exec, -1")
    return l
def post_flag(soff, extra=None):
    for x in flag_ops(soff, extra): a(x)

def cvt_s(dst, src, i): return f"v_cvt_pk_bf16_f32 v{dst+i}, v{src+2*i}, v{src+2*i+1}"
def cvt8(dst, src, n=8):
    for i in range(n): a(cvt_s(dst, src, i))
def pk_s(op, d, x, y, z=None, mods=""):
    s = f"v_pk_{op}_f32 {vr(d,2)}, {x}, {y}"
    if z is not None: s += f", {z}"
    return s + (" " + mods if mods else "")
def pk(*args): a(pk_s(*args))

vLane = 1; vL16 = 17
vPhiRaw = 4
vXa0, vXa1, vWa = 8, 9, 10
vXr = 11; vWr = 15
vWf = 20
vAcc = 52
vI = 100; vPhi = 108
vXf = 116
vGt = 244
NW = DD + 1
assert NW <= 8

a("s_cmp_ge_u32 s2, 256")
a("s_cbranch_scc1 L_end")
if opt("until", 0): a("s_memrealtime s[100:101]")
for (d, off) in ((sX, 0), (sWA, 8), (sWB, 32), (sWS, 80), (sPHI, 40), (sWOA, 16), (sWOB, 48), (sG, 56), (sOUT, 64)):
    a(f"s_load_dwordx2 {sr(d,2)}, s[0:1], {off}")
if CODEPF:
    a(f"s_getpc_b64 s[{t0}:{t1}]")
    a.label("L_pc")
    a(f"s_lshr_b32 s{t2}, s2, 3")
    a(f"s_lshl_b32 s{t2}, s{t2}, 7")
    a(f"v_lshl_add_u32 v2, v0, 12, s{t2}")
    a("v_min_u32 v2, L_codeend-L_pc-4, v2")
    a("v_cmp_gt_u32 vcc, 16, v0")
    a(f"s_and_saveexec_b64 s[{t2}:{t3}], vcc")
    a("s_cbranch_execz L_nopf")
    a(f"global_load_dword v3, v2, s[{t0}:{t1}]")
    a.label("L_nopf")
    a("s_mov_b64 exec, -1")
a("v_lshrrev_b32 v2, 6, v0")
a(f"v_and_b32 v{vLane}, 63, v0")
a(f"v_readfirstlane_b32 s{sWave}, v2")
a(f"s_and_b32 s{sHq2}, s2, 7")
a(f"s_lshr_b32 s{t0}, s2, 3")
a(f"s_and_b32 s{sType}, s{t0}, 1")
if MAP84:
    a(f"s_bfe_u32 s{t1}, s{t0}, 0x10001")
    a(f"s_and_b32 s{sHq}, s2, 6")
    a(f"s_add_u32 s{sHq}, s{sHq}, s{t1}")
    a(f"s_and_b32 s{t1}, s2, 1")
    a(f"s_lshl_b32 s{t1}, s{t1}, 3")
    a(f"s_lshr_b32 s{sRb}, s{t0}, 2")
    a(f"s_add_u32 s{sRb}, s{sRb}, s{t1}")
    a(f"s_and_b32 s{t1}, s{t0}, 3")
    a(f"s_lshl_b32 s{t1}, s{t1}, 1")
else:
    a(f"s_mov_b32 s{sHq}, s{sHq2}")
    a(f"s_lshr_b32 s{sRb}, s{t0}, 1")
    a(f"s_lshl_b32 s{t1}, s{sType}, 2")
a(f"s_add_u32 s{sKs}, s{sRb}, s{t1}")
a(f"s_and_b32 s{sKs}, s{sKs}, 7")
a(f"v_lshrrev_b32 v2, 3, v{vLane}")
a(f"v_and_b32 v19, 7, v{vLane}")
a(f"v_bfe_u32 v18, v{vLane}, 4, 2")
a(f"v_xor_b32 v18, v18, v19")
a(f"v_lshlrev_b32 v18, 4, v18")
a(f"v_lshl_add_u32 v{vXa0}, v2, 10, v18")
a(f"v_xor_b32 v{vXa1}, 64, v{vXa0}")
a(f"v_add_u32 v{vXa1}, 7168, v{vXa1}")
a(f"v_bfe_u32 v18, v{vLane}, 4, 1")
a(f"v_lshlrev_b32 v18, 2, v18")
a(f"v_xor_b32 v18, v18, v19")
a(f"v_lshlrev_b32 v18, 4, v18")
a(f"v_mul_u32_u24 v{vWa}, 3072, v2")
a(f"v_add_u32 v{vWa}, v{vWa}, v18")
a(f"s_lshl_b32 s{sXb}, s{sRb}, 17")
a(f"s_lshl_b32 s{t1}, s{sWave}, 14")
a(f"s_add_u32 s{sXb}, s{sXb}, s{t1}")
a(f"s_mul_i32 s{sWb}, s{sWave}, {8*3072}")
a(f"s_lshl_b32 s{t1}, s{sHq}, 7")
a(f"s_add_u32 s{sWb}, s{sWb}, s{t1}")
a(f"s_lshl_b32 s{t1}, s{sKs}, 7")
a(f"s_add_u32 s{sXoff}, s{sXb}, s{t1}")
a(f"s_mul_i32 s{t1}, s{sKs}, {64*3072}")
a(f"s_add_u32 s{sWoff}, s{sWb}, s{t1}")
a(f"s_lshl_b32 s{sLdsX}, s{sWave}, 11")
a(f"s_lshl_b32 s{sLdsW}, s{sWave}, 10")
a(f"s_add_u32 s{sLdsW}, s{sLdsW}, 65536")
for (d, n) in ((sX, 2048*512*2), (sWA, 512*1536*2), (sWB, 512*1536*2)):
    a(f"s_mov_b32 s{d+2}, {n}")
    a(f"s_mov_b32 s{d+3}, 0x20000")
a(f"s_cmp_eq_u32 s{sType}, 0")
a("s_waitcnt lgkmcnt(0)")
a("s_cbranch_scc0 L_type2")

def dma_list(segs):
    G = []
    nextk = [f"s_add_u32 s{sKs}, s{sKs}, 1", f"s_and_b32 s{sKs}, s{sKs}, 7"]
    nextw = [f"s_mul_i32 s{sWoff}, s{sKs}, {64*3072}", f"s_add_u32 s{sWoff}, s{sWoff}, s{sWb}"]
    def wl(p, u, seg):
        sw, col = segs[seg]
        return [f"s_add_u32 m0, s{sLdsW}, {wpos(p)*16384 + u*8192 - col}", "s_nop 0",
                f"buffer_load_dwordx4 v{vWa}, {sr(sw,4)}, s{sWoff} offen offset:{col} lds"]
    for p in range(8):
        e = p - 2
        G.append((p, e, [f"s_add_u32 m0, s{sLdsX}, {(p&3)*16384}", "s_nop 0",
                         f"buffer_load_dwordx4 v{vXa0}, {sr(sX,4)}, s{sXoff} offen lds"]))
        G.append((p, e, [f"buffer_load_dwordx4 v{vXa1}, {sr(sX,4)}, s{sXoff} offen offset:1024 lds"] + nextk +
                        [f"s_lshl_b32 s{sXoff}, s{sKs}, 7", f"s_add_u32 s{sXoff}, s{sXoff}, s{sXb}"]))
        G.append((p, e, wl(p, 0, 0)))
        G.append((p, e, wl(p, 1, 1) + nextw))
    for p in range(8, 12):
        for u in range(2):
            G.append((p, p - 4, wl(p, u, 2) + nextk + nextw))
    return G

def setup1():
    a(f"s_load_dwordx2 {sr(sTAG,2)}, {sr(sWS,2)}, {EPOCH}")
    for (d, n) in ((sWS, WS_SIZE), (sPHI, 32*512), (sOUT, 2048*512*2), (sG, 1024)):
        a(f"s_mov_b32 s{d+2}, {n}")
        a(f"s_mov_b32 s{d+3}, 0x20000")
    a(f"s_and_b32 s{sRt}, s{sWave}, 3")
    a(f"s_lshr_b32 s{sCg}, s{sWave}, 2")
    a(f"s_lshl_b32 s{sHa}, s{sHq}, 2")
    a(f"s_lshl_b32 s{t1}, s{sCg}, 1")
    a(f"s_add_u32 s{sHa}, s{sHa}, s{t1}")
    a(f"v_lshlrev_b32 v{vL16}, 4, v{vLane}")
    a(f"s_lshl_b32 s{t0}, s{sHa}, 9")
    a(f"buffer_load_dwordx4 {vr(vPhiRaw,4)}, v{vL16}, {sr(sPHI,4)}, s{t0} offen")
    a(f"s_lshl_b32 s{sTq}, s2, 3")
    a(f"s_add_u32 s{sTq}, s{sTq}, s{sWave}")
    a(f"s_lshl_b32 s{t0}, s{sTq}, 10")
    a(f"buffer_load_dwordx4 {vr(vPhi,4)}, v{vL16}, {sr(sX,4)}, s{t0} offen")
    a(f"buffer_load_dwordx4 {vr(vPhi+4,4)}, v{vL16}, {sr(sG,4)}, 0 offen")

def setup2(ty):
    a(f"s_lshr_b32 s{t0}, s2, 3")
    a(f"s_and_b32 s{t1}, s{t0}, 3")
    a(f"s_lshl_b32 s{sH}, s{sHq2}, 2")
    a(f"s_add_u32 s{sH}, s{sH}, s{t1}")
    a(f"s_lshr_b32 s{sC}, s{t0}, 2")
    a(f"s_lshl_b32 s{sTe}, s{sHq2}, 2")
    a(f"s_and_b32 s{t1}, s{t0}, 1")
    a(f"s_add_u32 s{sTe}, s{sTe}, s{t1}")
    a(f"s_lshl_b32 s{sTe}, s{sTe}, 1")
    a(f"s_and_b32 s{t1}, s{sWave}, 1")
    a(f"s_add_u32 s{sTe}, s{sTe}, s{t1}")
    a(f"s_lshr_b32 s{sN0}, s{t0}, 1")
    a(f"s_lshl_b32 s{sN0}, s{sN0}, 6")
    a(f"s_mov_b32 s{sW4}, s{sRt}")
    a(f"s_lshl_b32 s{sT}, s{sRb}, 2")
    a(f"s_add_u32 s{sT}, s{sT}, s{sRt}")
    a(f"s_lshl_b32 s{sPub}, s{sHa}, 16")
    a(f"s_lshl_b32 s{t2}, s{sT}, 10")
    a(f"s_add_u32 s{sPub}, s{sPub}, s{t2}")
    a(f"s_lshl_b32 s{sFl}, s{sHq}, 2")
    a(f"s_add_u32 s{sFl}, s{sFl}, s{sCg}")
    a(f"s_lshl_b32 s{sFl}, s{sFl}, 6")
    a(f"s_add_u32 s{sFl}, s{sFl}, s{sT}")
    a(f"s_lshl_b32 s{sFl}, s{sFl}, 3")
    a(f"s_add_u32 s{sFl}, s{sFl}, {FLGA + ty*1024}")
    a(f"v_and_b32 v2, 31, v{vLane}")
    a(f"v_lshrrev_b32 v{vGt}, 5, v{vLane}")
    a(f"v_bfe_u32 v18, v{vLane}, 1, 3")
    a(f"v_xor_b32 v18, v18, v{vGt}")
    a(f"v_lshlrev_b32 v18, 4, v18")
    a(f"s_lshl_b32 s{t0}, s{sRt}, 12")
    a(f"v_lshl_add_u32 v18, v2, 7, v18")
    a(f"v_add_u32 v{vXr}, s{t0}, v18")
    for kk in (1, 2, 3): a(f"v_xor_b32 v{vXr+kk}, {kk*32}, v{vXr}")
    a(f"v_bfe_u32 v18, v{vLane}, 2, 2")
    a(f"v_lshl_add_u32 v18, v{vGt}, 3, v18")
    a(f"v_lshlrev_b32 v18, 7, v18")
    a(f"v_bfe_u32 v19, v{vLane}, 3, 1")
    a(f"v_xor_b32 v19, s{sCg}, v19")
    a(f"v_lshl_add_u32 v18, v19, 6, v18")
    a(f"v_bfe_u32 v19, v{vLane}, 4, 1")
    a(f"v_lshl_add_u32 v18, v19, 5, v18")
    a(f"v_and_b32 v19, 3, v{vLane}")
    a(f"v_lshl_add_u32 v18, v19, 3, v18")
    a(f"v_add_u32 v{vWr}, 65536, v18")
    a(f"v_add_u32 v{vWr+1}, 131072, v18")
    if ty == 1:
        a(f"v_lshlrev_b32 v18, 2, v{vGt}")
        a(f"v_sub_u32 v18, v2, v18")
        a(f"v_mov_b32 v19, 0x3f80")
        a(f"v_mov_b32 v{vGt+1}, 0x3f800000")
        for r in range(8):
            tt = 8*((r & 3) >> 1) + 2*(r & 1) + 16*(r >> 2)
            a(f"v_cmp_eq_u32 s[{t0}:{t1}], {tt}, v18")
            a(f"v_cmp_eq_u32 s[{t2}:{t3}], {tt+1}, v18")
            a(f"v_cndmask_b32 v{vI+r}, 0, v19, s[{t0}:{t1}]")
            a(f"v_cndmask_b32 v{vI+r}, v{vI+r}, v{vGt+1}, s[{t2}:{t3}]")
        a(f"v_bfe_u32 v18, v{vLane}, 4, 1")
        a(f"v_lshlrev_b32 v18, 16, v18")
        a(f"v_lshl_add_u32 v18, v{vGt}, 8, v18")
        a(f"v_and_b32 v19, 15, v{vLane}")
        a(f"v_lshl_add_u32 v254, v19, 4, v18")
    a(f"v_mov_b32 v{vZERO}, 0")
    a(f"s_mov_b32 s{sL2E2}, {f32(LOG2E)}")
    a(f"s_mov_b32 s{sL2E2+1}, {f32(LOG2E)}")
    a(f"s_mov_b32 s{sQS}, {f32(0.25*LOG2E)}")
    a(f"s_mov_b32 s{sQS+1}, {f32(0.25*LOG2E)}")
    a(f"s_mov_b32 s{sVM}, 0xffff")
    a(f"s_mov_b32 s{sVM+1}, 0xffff")
    a(f"s_bfe_u32 s{t1}, s{sH}, 0x10001")
    a(f"s_lshl_b32 s{t2}, s{sHq2}, 2")
    a(f"s_add_u32 s{t2}, s{t2}, s{t1}")
    a(f"s_lshl_b32 s{t2}, s{t2}, 9")
    a(f"s_add_u32 s{t2}, s{t2}, {FLGA}")
    a(f"s_lshl_b32 s{t3}, s{sWave}, 6")
    a(f"s_add_u32 s{t3}, s{t3}, s{t2}")
    a(f"s_lshl_b32 s{t0}, s{sC}, 6")
    a(f"s_add_u32 s{t0}, s{t0}, s{t2}")
    a(f"v_and_b32 v18, 7, v{vLane}")
    a(f"v_lshlrev_b32 v18, 3, v18")
    a(f"v_bfe_u32 v19, v{vLane}, 3, 1")
    a(f"v_lshl_add_u32 v19, v19, 10, v18")
    a(f"v_add_u32 v19, s{t3}, v19")
    a(f"v_add_u32 v18, s{t0}, v18")
    a(f"v_cmp_gt_u32 s[{t0}:{t1}], 16, v{vLane}")
    a(f"v_cndmask_b32 v{vPoll}, v18, v19, s[{t0}:{t1}]")
    a(f"v_and_b32 v19, 15, v{vLane}")
    a(f"v_lshlrev_b32 v19, 4, v19")
    a(f"v_lshl_add_u32 v255, v{vGt}, 8, v19")
    a(f"s_lshl_b32 s{t0}, s{sWave}, 10")
    a(f"s_add_u32 s{t0}, s{t0}, {PHIS}")
    a(f"v_bfe_u32 v18, v{vLane}, 2, 2")
    a(f"v_lshl_add_u32 v18, v{vGt}, 2, v18")
    a(f"v_lshlrev_b32 v18, 5, v18")
    a(f"v_and_b32 v19, 3, v{vLane}")
    a(f"v_lshl_add_u32 v18, v19, 3, v18")
    a(f"v_add_u32 v18, s{t0}, v18")
    a(f"v_bfe_u32 v19, v{vLane}, 4, 1")
    a(f"v_mul_u32_u24 v19, 0x8000, v19")
    a(f"v_lshl_or_b32 v19, v19, 16, v19")
    a(f"v_add_u32 v{vGt+3}, s{t0}, v{vL16}")
    n = uid[0]; uid[0] += 1
    a(f"s_getpc_b64 {sr(sSUB,2)}")
    a.label(f"L_pcs{n}")
    a(f"s_add_u32 s{sSUB}, s{sSUB}, L_reduce-L_pcs{n}")
    a(f"s_addc_u32 s{sSUB+1}, s{sSUB+1}, 0")
    a("s_waitcnt lgkmcnt(0)")
    a(f"s_add_u32 s{sTAG}, s{sTAG}, 0x9e3779b9")
    a(f"s_addc_u32 s{sTAG+1}, s{sTAG+1}, 0x7f4a7c15")
    a(f"v_mov_b32 v{vTAG}, s{sTAG}")
    a(f"v_mov_b32 v{vTAG+1}, s{sTAG+1}")
vVst, vVld = 254, 255

def gate_ops():
    x, w, g0, g1 = vPhi, vPhi+4, vGt, vGt+1
    g = [[f"v_dot2_f32_bf16 v{g0}, v{x}, v{w}, 0", f"v_dot2_f32_bf16 v{g1}, v{x+1}, v{w+1}, 0"],
         [f"v_dot2_f32_bf16 v{g0}, v{x+2}, v{w+2}, v{g0}", f"v_dot2_f32_bf16 v{g1}, v{x+3}, v{w+3}, v{g1}"],
         [f"s_lshl_b32 s{sTq}, s{sTq}, 2", f"s_add_u32 s{sTq}, s{sTq}, {GW}"],
         [f"v_add_f32 v{g0}, v{g0}, v{g1}"]]
    for m in ("quad_perm:[1,0,3,2]", "quad_perm:[2,3,0,1]", "row_half_mirror", "row_mirror"):
        g.append([f"v_add_f32_dpp v{g0}, v{g0}, v{g0} {m} row_mask:0xf bank_mask:0xf"])
    g.append([f"v_mov_b32 v{g1}, v{g0}"])
    g.append([f"v_permlane16_swap_b32 v{g0}, v{g1}"])
    g.append([f"v_add_f32 v{g0}, v{g0}, v{g1}", f"v_mov_b32 v{g1}, v{g0}"])
    g.append([f"v_permlane32_swap_b32 v{g0}, v{g1}"])
    g.append([f"v_add_f32 v{g0}, v{g0}, v{g1}", f"v_mul_f32 v{g0}, s{sL2E}, v{g0}"])
    g.append([f"v_exp_f32 v{g0}, -v{g0}"])
    g.append([f"v_add_f32 v{g0}, 1.0, v{g0}"])
    g.append([f"v_rcp_f32 v{g0}, v{g0}"])
    return g
def gate_store():
    return ["s_mov_b64 exec, 1", f"buffer_store_dword v{vGt}, v{vZERO}, {sr(sWS,4)}, s{sTq} offen sc1", "s_mov_b64 exec, -1"]

def gemm(ty, vtype, segs, pub_ops):
    G = dma_list(segs)
    upto = {}
    for i, (p, e, _) in enumerate(G): upto[p] = i + 1
    ng = [0]
    def issue(n):
        for _ in range(n):
            for x in G[ng[0]][2]: a(x)
            ng[0] += 1
    MF = []
    def wr(m, p, off):
        pos = wpos(p)
        return [f"ds_read_b64_tr_b16 {vr(vWf+4*(m%NW)+2*sec,2)}, v{vWr+(pos>>2)} offset:{(pos&3)*16384+off+sec*512}" for sec in range(2)]
    for i in range(32):
        p, kk = i >> 2, i & 3
        for seg in range(2):
            r = []
            if seg == 0: r.append(f"ds_read_b128 {vr(vXf+4*i,4)}, v{vXr+kk} offset:{(p&3)*16384}")
            r += wr(len(MF), p, seg*8192 + kk*2048)
            MF.append((p, i, seg, r))
    for i in range(32):
        p = 8 + (i >> 3)
        MF.append((p, i, 2, wr(len(MF), p, ((i >> 2) & 1)*8192 + (i & 3)*2048)))
    stamp(0)
    issue(4)
    setup1()
    issue(PRO - 4)
    if TOUCH2:
        assert PRO == 6
        a(f"s_sub_u32 s{t0}, s{sKs}, 2")
        a(f"s_and_b32 s{t0}, s{t0}, 7")
        a(f"s_mul_i32 s{t0}, s{t0}, {64*3072}")
        a(f"s_add_u32 s{t0}, s{t0}, s{sWb}")
        a(f"buffer_load_dword v{vGt+2}, v{vWa}, {sr(segs[2][0],4)}, s{t0} offen offset:{segs[2][1]}")
    setup2(ty)
    a(f"s_waitcnt vmcnt({PRO-4+3+TOUCH2})")
    a("s_barrier")
    stamp(1, 1)
    for m in range(DD):
        for x in MF[m][3]: a(x)
    vis = 0
    nst = [0]
    gops = gate_ops()
    pops = list(pub_ops) + [gate_store()]
    for m in range(96):
        nx = m + DD
        if nx < 96 and MF[nx][0] != vis:
            vis = MF[nx][0]
            assert ng[0] >= upto[vis], (m, ng[0])
            a(f"s_waitcnt vmcnt({ng[0] - upto[vis] + nst[0]})")
            a("s_barrier")
            if vis in (1, 2, 4, 6, 8, 9, 10, 11): stamp({1: 2, 2: 3, 4: 4, 6: 5, 8: 6, 9: 7, 10: 8, 11: 9}[vis], 1)
        later = sum(len(MF[k][3]) for k in range(m+1, min(nx, 96)))
        assert later <= 15
        a(f"s_waitcnt lgkmcnt({later})")
        p, i, seg, _ = MF[m]
        x = vr(vXf+4*i, 4); w = vr(vWf+4*(m % NW), 4); d = vr(vAcc+16*seg, 16)
        c = "0" if i == 0 else d
        if vtype[seg]: a(f"{M32} {d}, {x}, {w}, {c}")
        else: a(f"{M32} {d}, {w}, {x}, {c}")
        if nx < 96:
            for x in MF[nx][3]: a(x)
        if ng[0] < len(G) and G[ng[0]][1] <= vis: issue(1)
        elif vis >= 1 and gops:
            for x in gops.pop(0): a(x)
        if m >= 65 and pops:
            assert ng[0] == len(G) and not gops
            for x in pops.pop(0):
                a(x)
                if x.startswith("buffer_store"): nst[0] += 1
    stamp(10, 1)
    stamp(1)

def wphi_stage():
    a(f"ds_write_b128 v{vGt+3}, {vr(vPhiRaw,4)}")
    a("s_waitcnt lgkmcnt(0)")
    for u in range(2):
        for sec in range(2):
            a(f"ds_read_b64_tr_b16 {vr(vPhi+4*u+2*sec,2)}, v18 offset:{u*512+sec*256}")
def wphi_sign():
    a("s_waitcnt lgkmcnt(0)")
    for i in range(8): a(f"v_xor_b32 v{vPhi+i}, v19, v{vPhi+i}")

def dual_softmax(D, PH, tmp):
    mp, mn = tmp, tmp+1
    H = ((mp, 0), (mn, 8))
    for (m, o) in H: a(f"v_max3_f32 v{m}, v{D+o}, v{D+o+1}, v{D+o+2}")
    for (m, o) in H: a(f"v_max3_f32 v{m}, v{m}, v{D+o+3}, v{D+o+4}")
    for (m, o) in H: a(f"v_max3_f32 v{m}, v{m}, v{D+o+5}, v{D+o+6}")
    for (m, o) in H: a(f"v_max_f32 v{m}, v{m}, v{D+o+7}")
    a(f"v_permlane32_swap_b32 v{mp}, v{mn}")
    a(f"v_max_f32 v{mp}, v{mp}, v{mn}")
    a(f"v_mul_f32 v{mp}, s{sL2E}, v{mp}")
    a(f"v_mov_b32 v{mn}, v{mp}")
    a(f"v_permlane32_swap_b32 v{mp}, v{mn}")
    for i in range(8):
        hi = 1 if i >= 4 else 0
        pk("fma", D+2*i, vr(D+2*i,2), sr(sL2E2,2), vr(mp,2), f"op_sel:[0,0,{hi}] op_sel_hi:[1,1,{hi}] neg_lo:[0,0,1] neg_hi:[0,0,1]")
    for i in range(16): a(f"v_exp_f32 v{D+i}, v{D+i}")
    s1, s2 = tmp+2, tmp+4
    for (s, o) in ((s1, 0), (s2, 8)): pk("add", s, vr(D+o,2), vr(D+o+2,2))
    for (s, o) in ((s1, 0), (s2, 8)): pk("add", s, vr(s,2), vr(D+o+4,2))
    for (s, o) in ((s1, 0), (s2, 8)): pk("add", s, vr(s,2), vr(D+o+6,2))
    a(f"v_add_f32 v{mp}, v{s1}, v{s1+1}")
    a(f"v_add_f32 v{mn}, v{s2}, v{s2+1}")
    a(f"v_permlane32_swap_b32 v{mp}, v{mn}")
    a(f"v_add_f32 v{mp}, v{mp}, v{mn}")
    a(f"v_rcp_f32 v{mp}, v{mp}")
    a(f"v_mov_b32 v{mn}, v{mp}")
    a(f"v_permlane32_swap_b32 v{mp}, v{mn}")
    for i in range(8):
        hi = 1 if i >= 4 else 0
        pk("mul", D+2*i, vr(D+2*i,2), vr(mp,2), None, f"op_sel:[0,{hi}] op_sel_hi:[1,{hi}]")
    cvt8(PH, D)

vK, vV, vQ = 116, 148, 212
vS, vP, vO = 20, 52, 60
sK0, sK1, sV0, sV1, sQ0, sQ1 = sXoff, sWoff, sLdsX, sLdsW, sKs, sXb
def kvq_prep():
    a(f"v_and_b32 v2, 27, v{vLane}")
    a(f"v_cmp_eq_u32 s[{t0}:{t1}], 16, v2")
    a(f"v_mov_b32 v3, 0x3f803f80")
    a(f"v_cndmask_b32 v{vV}, 0, v3, s[{t0}:{t1}]")
    a(f"v_mov_b32 v{vV+1}, v{vV}")
    for i in range(1, 32): a(f"v_pk_mov_b32 {vr(vV+2*i,2)}, {vr(vV,2)}, {vr(vV,2)}")
    a(f"s_lshl_b32 s{t1}, s{sH}, 16")
    a(f"s_lshl_b32 s{t2}, s{sC}, 13")
    a(f"s_add_u32 s{sQ0}, s{t1}, s{t2}")
    a(f"s_add_u32 s{sQ0}, s{sQ0}, {QA}")
    a(f"s_add_u32 s{sQ1}, s{sQ0}, 4096")
    a(f"s_lshl_b32 s{t2}, s{sWave}, 13")
    a(f"s_add_u32 s{t1}, s{t1}, s{t2}")
    a(f"s_add_u32 s{sK0}, s{t1}, {KA}")
    a(f"s_add_u32 s{sV0}, s{t1}, {VA}")
    a(f"s_add_u32 s{sK1}, s{sK0}, 4096")
    a(f"s_add_u32 s{sV1}, s{sV0}, 4096")
def ldK(kt): a(f"buffer_load_dwordx4 {vr(vK+4*kt,4)}, v{vL16}, {sr(sWS,4)}, s{sK0 if kt < 4 else sK1} offen offset:{(kt&3)*1024} sc1")
def ldQ(t): a(f"buffer_load_dwordx4 {vr(vQ+4*t,4)}, v{vL16}, {sr(sWS,4)}, s{sQ0 if t < 4 else sQ1} offen offset:{(t&3)*1024} sc1")
def ldV(kt):
    a(f"s_mov_b64 exec, {sr(sVM,2)}")
    for m in range(2):
        a(f"buffer_load_dwordx4 {vr(vV+8*kt+4*m,4)}, v{vVld}, {sr(sWS,4)}, s{sV0 if kt < 4 else sV1} offen offset:{(kt&3)*1024+m*512} sc1")
    a("s_mov_b64 exec, -1")
def ldG(g):
    if g < 8:
        ldV(g)
        if g < 7: ldK(g+1)
        else: ldQ(1)
    else:
        for t in range(2 + 3*(g-8), 5 + 3*(g-8)): ldQ(t)

def if_group(isY, fn):
    n = uid[0]; uid[0] += 1
    a(f"s_cmp_ge_u32 s{sWave}, 4")
    a(f"s_cbranch_scc{0 if isY else 1} L_g{n}")
    fn()
    a.label(f"L_g{n}")
def after_gemm():
    wphi_stage()
    a("s_setprio 2")
    a("s_nop 2")
    def y():
        post_flag(sFl)
        stamp(2)
        a("s_setprio 1")
    if_group(True, y)
def x_flag():
    def x():
        post_flag(sFl)
        stamp(2)
    if_group(False, x)

vTmp = 8
def grp(l, n): return [l[i:i+n] for i in range(0, len(l), n)]
st4 = lambda r, va, so, off=0: f"buffer_store_dwordx4 {vr(r,4)}, v{va}, {sr(sWS,4)}, s{so} offen" + (f" offset:{off}" if off else "") + " sc1"
pub = grp([cvt_s(vAcc, vAcc, i) for i in range(8)], PUBN)
pub += [[f"s_add_u32 s{t2}, s{sPub}, {KA}", f"s_add_u32 s{t3}, s{sPub}, {KA+65536}", st4(vAcc, vL16, t2)], [st4(vAcc+4, vL16, t3)]]
pub += grp([pk_s("mul", vAcc+16+2*i, vr(vAcc+16+2*i,2), sr(sQS,2)) for i in range(8)] + [cvt_s(vAcc+16, vAcc+16, i) for i in range(8)], PUBN)
pub += [[f"s_add_u32 s{t2}, s{sPub}, {QA}", f"s_add_u32 s{t3}, s{sPub}, {QA+65536}", st4(vAcc+16, vL16, t2)], [st4(vAcc+20, vL16, t3)]]
gemm(0, [False, False, False], [(sWA, 1024), (sWA, 0), (sWB, 0)], pub)
after_gemm()
cvt8(20, vAcc+32)
wphi_sign()
for u in range(2):
    a(f"{M32} {vr(52+16*u,16)}, {vr(vPhi+4*u,4)}, {vr(20+4*u,4)}, 0")
a(f"s_lshl_b32 s{t0}, s{sRt}, 14")
a(f"s_lshl_b32 s{t1}, s{sCg}, 12")
a(f"s_add_u32 s{t0}, s{t0}, s{t1}")
a(f"s_add_u32 s{t0}, s{t0}, {WO}")
a(f"v_add_u32 v2, s{t0}, v{vL16}")
dual_softmax(52, 28, vTmp)
x_flag()
for q in range(2): a(f"ds_write_b128 v2, {vr(28+4*q,4)} offset:{q*1024}")
dual_softmax(68, 36, vTmp)
for q in range(2, 4): a(f"ds_write_b128 v2, {vr(28+4*q,4)} offset:{q*1024}")
a("s_branch L_p1done")

a.label("L_type2")
pub = grp([cvt_s(vAcc, vAcc, i) for i in range(8)], PUBN)
pub += [[f"s_add_u32 s{t2}, s{sPub}, {VA}", st4(vAcc, vVst, t2)], [st4(vAcc+4, vVst, t2, 512)]]
pub += grp([cvt_s(vAcc+16, vAcc+16, i) for i in range(8)], PUBN)
gemm(1, [True, False, True], [(sWA, 2048), (sWB, 1024), (sWB, 2048)], pub)
after_gemm()
wphi_sign()
for u in range(2):
    a(f"{M32} {vr(20+16*u,16)}, {vr(vPhi+4*u,4)}, {vr(68+4*u,4)}, 0")
cvt8(84, 84)
for i in range(8): a(f"v_mov_b32 v{92+i}, 0x3f803f80")
for i in range(8): a(f"v_permlane16_swap_b32 v{84+i}, v{92+i}")
dual_softmax(20, 52, vTmp)
x_flag()
a(f"{M32} {vr(20,16)}, {vr(52,4)}, {vr(vI,4)}, 0")
a(f"{M32} {vr(20,16)}, {vr(56,4)}, {vr(vI+4,4)}, {vr(20,16)}")
dual_softmax(36, 60, vTmp)
a(f"{M32} {vr(36,16)}, {vr(60,4)}, {vr(vI,4)}, 0")
a(f"{M32} {vr(36,16)}, {vr(64,4)}, {vr(vI+4,4)}, {vr(36,16)}")
cvt8(52, 20)
a(f"{M32} {vr(68,16)}, {vr(52,4)}, {vr(84,4)}, 0")
a(f"{M32} {vr(68,16)}, {vr(56,4)}, {vr(88,4)}, {vr(68,16)}")
cvt8(60, 36)
a(f"{M32} {vr(20,16)}, {vr(60,4)}, {vr(92,4)}, 0")
a(f"{M32} {vr(20,16)}, {vr(64,4)}, {vr(96,4)}, {vr(20,16)}")
a(f"s_lshl_b32 s{t0}, s{sCg}, 15")
a(f"s_lshl_b32 s{t1}, s{sRt}, 12")
a(f"s_add_u32 s{t0}, s{t0}, s{t1}")
a(f"s_add_u32 s{t0}, s{t0}, {WO}")
a(f"v_add_u32 v2, s{t0}, v{vL16}")
for u in range(2):
    for q in range(4):
        a(f"ds_write_b128 v2, {vr((68, 20)[u]+4*q,4)} offset:{u*16384+q*1024}")

a.label("L_p1done")
vOw0, vOw1, vOw2 = 4, 5, 6
a(f"s_mul_i32 s{t0}, s{sW4}, 2304")
a(f"s_add_u32 s{t0}, s{t0}, {PART}")
a(f"v_add_u32 v{vOw0}, s{t0}, v{vL16}")
a(f"v_add_u32 v{vOw1}, 1024, v{vOw0}")
a(f"s_add_u32 s{t0}, s{t0}, 2048")
a(f"v_lshl_add_u32 v{vOw2}, v{vLane}, 2, s{t0}")

def o_wr(t, k):
    O = vO + 16*(t & 1)
    return [f"ds_write_b128 v{vOw0}, {vr(O,4)} offset:{t*PSLOT}", f"ds_write_b128 v{vOw1}, {vr(O+4,4)} offset:{t*PSLOT}",
            f"ds_write_b32 v{vOw2}, v{O+8} offset:{t*PSLOT}"][k]
def o_rd(t, k):
    O = vO + 16*(t & 1)
    return [f"ds_read_b128 {vr(O,4)}, v{vOw0} offset:{t*PSLOT}", f"ds_read_b128 {vr(O+4,4)}, v{vOw1} offset:{t*PSLOT}",
            f"ds_read_b32 v{O+8}, v{vOw2} offset:{t*PSLOT}"][k]

def attention(isY):
    stamp(2, 2)
    for n in range(64):
        t, kt = n >> 3, n & 7
        S = vS + 16*(n & 1); Sn = vS + 16*((n+1) & 1)
        O = vO + 16*(t & 1)
        Op = O if kt > 0 else vO + 16*((t & 1) ^ 1)
        e = lambda i: a(f"v_exp_f32 v{S+i}, v{S+i}")
        c = lambda j: a(f"v_cvt_pk_bf16_f32 v{vP+j}, v{S+2*j}, v{S+2*j+1}")
        e(0); e(1)
        if n > 0: a(f"{M32} {vr(Op,16)}, {vr(vV+8*((kt-1)&7)+4,4)}, {vr(vP+4,4)}, {vr(Op,16)}")
        if isY and t < 7 and kt in (5, 6): a(o_rd(t+1, kt-4))
        if (not isY and (t, kt) in ((0, 7), (ALPHA_T, 4))) or (isY and (t, kt) == (4, 4)):
            a("s_waitcnt lgkmcnt(0)")
            a("s_barrier")
        e(2); e(3); c(0); e(4); e(5); c(1); e(6); e(7); c(2)
        if not isY and t == 0: a(f"s_waitcnt vmcnt({3*(min(kt+GA-1, 9) - kt)})")
        if not isY and t == 1 and kt == 7: a("s_waitcnt vmcnt(0)")
        if n < 63: a(f"{M32} {vr(Sn,16)}, {vr(vK+4*((kt+1)&7),4)}, {vr(vQ+4*((n+1)>>3),4)}, 0")
        if not isY and n + GA <= 9: ldG(n + GA)
        if isY and kt == 0: a("s_waitcnt lgkmcnt(0)")
        e(8); c(3); e(9); e(10)
        a(f"{M32} {vr(O,16)}, {vr(vV+8*kt,4)}, {vr(vP,4)}, {'0' if (kt == 0 and not isY) else vr(O,16)}")
        if t > 0 and kt in (1, 2, 3): a(o_wr(t-1, kt-1))
        if isY and t < 7 and kt == 4: a(o_rd(t+1, 0))
        e(11); c(4); e(12); e(13); c(5); e(14); e(15); c(6); c(7)
        if kt == 7: stamp(3+t, 2)
    a(f"{M32} {vr(vO+16,16)}, {vr(vV+8*7+4,4)}, {vr(vP+4,4)}, {vr(vO+16,16)}")
    for k in range(3): a(o_wr(7, k))
    a("s_waitcnt lgkmcnt(0)")

def wo_dma():
    a(f"v_lshrrev_b32 v2, 2, v{vLane}")
    a(f"v_and_b32 v3, 3, v{vLane}")
    a(f"v_lshlrev_b32 v3, 4, v3")
    a(f"v_lshl_add_u32 v18, v2, 10, v3")
    a(f"s_cmp_ge_u32 s{sW4}, 2")
    a(f"s_cselect_b32 s{sWo}, s{sWOA}, s{sWOB}")
    a(f"s_cselect_b32 s{sWo+1}, s{sWOA+1}, s{sWOB+1}")
    a(f"s_mov_b32 s{sWo+2}, {512*512*2}")
    a(f"s_mov_b32 s{sWo+3}, 0x20000")
    a(f"s_and_b32 s{t0}, s{sW4}, 1")
    a(f"s_lshl_b32 s{t0}, s{t0}, 18")
    a(f"s_add_u32 s{t0}, s{t0}, s{sN0}")
    a(f"s_lshl_b32 s{t1}, s{sW4}, 14")
    a(f"s_add_u32 s{t1}, s{t1}, {WO}")
    a(f"s_mov_b32 s{t2}, 16")
    a.label(f"L_wo")
    a(f"s_mov_b32 m0, s{t1}")
    a(f"s_add_u32 s{t1}, s{t1}, 1024")
    a(f"buffer_load_dwordx4 v18, {sr(sWo,4)}, s{t0} offen lds")
    a(f"s_add_u32 s{t0}, s{t0}, 16384")
    a(f"s_sub_u32 s{t2}, s{t2}, 1")
    a(f"s_cmp_lg_u32 s{t2}, 0")
    a(f"s_cbranch_scc1 L_wo")

vWoA = 7
def wo_addr():
    a(f"v_lshrrev_b32 v3, 5, v{vLane}")
    a(f"v_bfe_u32 v18, v{vLane}, 2, 2")
    a(f"v_lshl_add_u32 v18, v3, 2, v18")
    a(f"v_lshlrev_b32 v18, 6, v18")
    a(f"v_bfe_u32 v19, v{vLane}, 4, 1")
    a(f"v_lshl_add_u32 v18, v19, 5, v18")
    a(f"v_and_b32 v19, 3, v{vLane}")
    a(f"v_lshl_add_u32 v18, v19, 3, v18")
    a(f"v_add_u32 v{vWoA}, {WO}, v18")

vFB, vFA, vAccA, vW3, vG, vAccB = 20, 148, 212, 228, 240, 148
def loadn(dst, n, soff):
    for i in range(n):
        a(f"buffer_load_dwordx4 {vr(dst+4*i,4)}, v{vL16}, {sr(sWS,4)}, s{soff} offen offset:{(i&3)*1024} sc1")
        if (i & 3) == 3 and i < n-1: a(f"s_add_u32 s{soff}, s{soff}, 4096")
def proj(acc, frag, n, vaddr, pre=None):
    def rd(i):
        for sec in range(2):
            a(f"ds_read_b64_tr_b16 {vr(vW3+4*(i%3)+2*sec,2)}, v{vaddr} offset:{i*1024+sec*512}")
    rd(0); rd(1)
    if pre: pre()
    for i in range(n):
        if i + 2 < n: rd(i+2)
        a(f"s_waitcnt lgkmcnt({2*min(2, n-1-i)})")
        a(f"{M32} {vr(acc,16)}, {vr(vW3+4*(i%3),4)}, {vr(frag+4*i,4)}, {'0' if i == 0 else vr(acc,16)}")
def load_g(dst, stile):
    a(f"s_lshl_b32 s{t1}, s{stile}, 7")
    a(f"s_add_u32 s{t1}, s{t1}, {GW}")
    a(f"buffer_load_dword v{dst}, v14, {sr(sWS,4)}, s{t1} offen sc1")

def tail_addr():
    a(f"s_lshr_b32 s{sCg}, s{sWave}, 1")
    a(f"s_lshl_b32 s{t0}, s{sCg}, 13")
    a(f"s_add_u32 s{t0}, s{t0}, 32768")
    a(f"v_add_u32 v12, s{t0}, v{vWoA}")
    a(f"s_add_u32 s{t0}, s{sTe}, 4")
    a(f"s_lshl_b32 s{t0}, s{t0}, 5")
    a(f"s_lshl_b32 s{t1}, s{sCg}, 3")
    a(f"s_add_u32 s{sRt}, s{t0}, s{t1}")
    a(f"s_lshl_b32 s{t0}, s{sRt}, 3")
    a(f"s_add_u32 s{t0}, s{t0}, {FLGO}")
    a(f"v_and_b32 v2, 7, v{vLane}")
    a(f"v_lshl_add_u32 v15, v2, 3, s{t0}")
    a(f"s_lshl_b32 s{sRt}, s{sRt}, 10")
    a(f"s_add_u32 s{sRt}, s{sRt}, {OA}")
    a(f"v_and_b32 v2, 31, v{vLane}")
    a(f"v_lshlrev_b32 v14, 2, v2")
    a(f"v_mul_u32_u24 v2, 144, v2")
    a(f"v_lshrrev_b32 v3, 5, v{vLane}")
    a(f"v_lshl_add_u32 v2, v3, 4, v2")
    a(f"s_and_b32 s{t0}, s{sWave}, 1")
    a(f"s_lshl_b32 s{t0}, s{t0}, 2")
    a(f"s_add_u32 s{t0}, s{t0}, s{sCg}")
    a(f"s_mul_i32 s{t0}, s{t0}, 4608")
    a(f"s_add_u32 s{t0}, s{t0}, {RED}")
    a(f"v_add_u32 v8, s{t0}, v2")
    a(f"v_lshrrev_b32 v2, 3, v{vLane}")
    a(f"s_lshl_b32 s{t0}, s{sCg}, 3")
    a(f"v_add_u32 v2, s{t0}, v2")
    a(f"v_and_b32 v3, 7, v{vLane}")
    a(f"v_mul_u32_u24 v9, 144, v2")
    a(f"v_lshl_add_u32 v9, v3, 4, v9")
    a(f"s_and_b32 s{t0}, s{sWave}, 1")
    a(f"s_mul_i32 s{t0}, s{t0}, {4*4608}")
    a(f"v_add_u32 v9, s{t0}, v9")
    a(f"v_lshlrev_b32 v11, 10, v2")
    a(f"v_lshl_add_u32 v11, v3, 3, v11")
def tail_w():
    for i in range(8):
        for sec in range(2):
            a(f"ds_read_b64_tr_b16 {vr(100+4*i+2*sec,2)}, v12 offset:{i*1024+sec*512}")
        if i == 3: a("s_waitcnt lgkmcnt(4)")

a(f"s_cmp_ge_u32 s{sWave}, 4")
a("s_cbranch_scc1 L_Y")
kvq_prep()
stamp(3)
poll(vPoll)
stamp(4)
ldQ(0); ldK(0)
for g in range(GA): ldG(g)
a(f"s_waitcnt vmcnt({3*GA}) lgkmcnt(0)")
a("s_setprio 0")
a(f"{M32} {vr(vS,16)}, {vr(vK,4)}, {vr(vQ,4)}, 0")
stamp(5)
attention(False)
a("s_barrier")
stamp(6)
a("s_setprio 1")
a(f"s_lshr_b32 s{sCg}, s{sWave}, 1")
a(f"s_lshl_b32 s{sT}, s{sCg}, 2")
a(f"s_add_u32 s{sT}, s{sT}, s{sTe}")
a(f"s_lshl_b32 s{t0}, s{sT}, 8")
a(f"s_add_u32 s{t0}, s{t0}, {FLGOB}")
a(f"v_and_b32 v2, 31, v{vLane}")
a(f"v_lshl_add_u32 v{vPoll}, v2, 3, s{t0}")
poll(vPoll)
a(f"s_lshl_b32 s{t0}, s{sT}, 15")
a(f"s_add_u32 s{t0}, s{t0}, {OB}")
loadn(vFB, 32, t0)
wo_addr()
tail_addr()
load_g(vG, sTe)
load_g(vG+1, sT)
a(f"s_add_u32 s{t0}, s{sTe}, 4")
load_g(vG+2, t0)
a(f"s_lshl_b32 s{t0}, s{sCg}, 14")
a(f"s_add_u32 s{t0}, s{t0}, 32768")
a(f"v_add_u32 v13, s{t0}, v{vWoA}")
a(f"s_lshl_b32 s{sT}, s{sTe}, 5")
a(f"s_lshl_b32 s{t0}, s{sCg}, 4")
a(f"s_add_u32 s{sT}, s{sT}, s{t0}")
a(f"s_lshl_b32 s{t0}, s{sT}, 3")
a(f"s_add_u32 s{t0}, s{t0}, {FLGO}")
a(f"v_and_b32 v2, 15, v{vLane}")
a(f"v_lshl_add_u32 v{vPoll}, v2, 3, s{t0}")
a(f"s_lshl_b32 s{sT}, s{sT}, 10")
a(f"s_add_u32 s{sT}, s{sT}, {OA}")
a(f"s_mov_b32 s{sTq}, s{sWave}")
a("s_barrier")
a(f"s_swappc_b64 {sr(sRET,2)}, {sr(sSUB,2)}")
post_flag(t0)
poll(vPoll)
loadn(vFA, 16, sT)
a(f"v_sub_f32 v{vG+1}, 1.0, v{vG+1}")
a(f"s_and_b32 s{t0}, s{sWave}, 1")
a(f"s_lshl_b32 s{t0}, s{t0}, 12")
a(f"v_add_u32 v10, s{t0}, v{vL16}")
a(f"v_and_b32 v2, 31, v{vLane}")
a(f"v_lshlrev_b32 v2, 10, v2")
a(f"v_lshrrev_b32 v3, 5, v{vLane}")
a(f"v_lshl_add_u32 v16, v3, 4, v2")
a(f"s_lshl_b32 s{sT}, s{sTe}, 15")
a(f"s_add_u32 s{sT}, s{sT}, s{sN0}")
def pre_delta():
    a("s_waitcnt vmcnt(0)")
    stamp(7)
    a("s_barrier")
    stamp(8)
proj(vAccA, vFA, 16, 13, pre_delta)
a(f"s_cmp_ge_u32 s{sWave}, 2")
a("s_cbranch_scc0 L_Xnw")
a("s_nop 9")
for j in range(4): a(f"ds_write_b128 v10, {vr(vAccA+4*j,4)} offset:{EX+j*1024}")
a.label("L_Xnw")
def pre_e():
    a("s_waitcnt lgkmcnt(4)")
    a("s_barrier")
proj(vAccB, vFB, 32, vWoA, pre_e)
a(f"s_cmp_ge_u32 s{sWave}, 2")
a("s_cbranch_scc0 L_Xearly")
tail_w()
for i in range(8): pk("mul", vAccB+2*i, vr(vAccB+2*i,2), vr(vG,2), None, "op_sel:[0,1] op_sel_hi:[1,1]")
a("s_branch L_tail")
a.label("L_Xearly")
for j in range(4): a(f"ds_read_b128 {vr(164+4*j,4)}, v10 offset:{EX+j*1024}")
a("s_nop 6")
for i in range(8): pk("mul", vAccB+2*i, vr(vAccB+2*i,2), vr(vG,2), None, "op_sel:[0,1] op_sel_hi:[1,1]")
a("s_waitcnt lgkmcnt(0)")
tail_w()
for i in range(8): pk("add", vAccA+2*i, vr(vAccA+2*i,2), vr(164+2*i,2))
for i in range(8): pk("fma", vAccA+2*i, vr(vAccA+2*i,2), vr(vG,2), vr(vAccB+2*i,2), "op_sel:[0,0,0] op_sel_hi:[1,0,1]")
cvt8(164, vAccA)
for i in range(16): a(f"v_mov_b32 v{vAccB+i}, 0")
for jj in range(2):
    a(f"v_permlane32_swap_b32 v{164+4*jj}, v{164+4*jj+2}")
    a(f"v_permlane32_swap_b32 v{164+4*jj+1}, v{164+4*jj+3}")
for jj in range(2):
    a(f"buffer_store_dwordx4 {vr(164+4*jj,4)}, v16, {sr(sOUT,4)}, s{sT} offen offset:{jj*32}")
a("s_branch L_tail")

a.label("L_Y")
a("s_waitcnt lgkmcnt(0)")
a("s_barrier")
a(f"s_lshl_b32 s{t0}, s{sW4}, 14")
a(f"s_add_u32 s{t0}, s{t0}, {WO}")
a(f"v_add_u32 v3, s{t0}, v{vL16}")
a(f"s_cmp_eq_u32 s{sType}, 0")
a("s_cbranch_scc1 L_Yphi")
for rt in range(4):
    for q in range(4):
        a(f"ds_read_b128 {vr(20+16*rt+4*q,4)}, v3 offset:{rt*4096+q*1024}")
    if rt == 2: a("s_waitcnt lgkmcnt(8)")
a(f"s_lshl_b32 s{t0}, s{sHq}, 2")
a(f"s_add_u32 s{t0}, s{t0}, s{sW4}")
a(f"s_lshl_b32 s{t0}, s{t0}, 4")
a(f"s_add_u32 s{t0}, s{t0}, s{sRb}")
a(f"s_lshl_b32 s{t2}, s{t0}, 12")
a(f"s_add_u32 s{t2}, s{t2}, {KVP}")
a(f"s_lshl_b32 s{t0}, s{t0}, 3")
a(f"s_add_u32 s{t0}, s{t0}, {FLGK}")
a("s_waitcnt lgkmcnt(0)")
for i in range(16): pk("add", 20+2*i, vr(20+2*i,2), vr(52+2*i,2))
for i in range(8): pk("add", 20+2*i, vr(20+2*i,2), vr(36+2*i,2))
for q in range(4): a(st4(20+4*q, vL16, t2, q*1024))
a("s_branch L_Ypub")
a.label("L_Yphi")
for q in range(8): a(f"ds_read_b128 {vr(20+4*q,4)}, v3 offset:{q*1024}")
a(f"s_lshl_b32 s{t1}, s{sHq}, 19")
a(f"s_lshl_b32 s{t2}, s{sT}, 11")
a(f"s_add_u32 s{t1}, s{t1}, s{t2}")
a(f"s_add_u32 s{t1}, s{t1}, {PHQ}")
a(f"s_lshl_b32 s{t0}, s{sHq}, 6")
a(f"s_add_u32 s{t0}, s{t0}, s{sT}")
a(f"s_lshl_b32 s{t0}, s{t0}, 3")
a(f"s_add_u32 s{t0}, s{t0}, {FLGP}")
a("s_waitcnt lgkmcnt(0)")
for q in range(8):
    a(st4(20+4*q, vL16, t1, (q & 1)*1024))
    if q & 1: a(f"s_add_u32 s{t1}, s{t1}, 131072")
a.label("L_Ypub")
post_flag(t0)
kvq_prep()
stamp(3)
poll(vPoll)
stamp(4)
ldQ(0); ldK(0)
for g in range(10): ldG(g)
a(f"s_lshl_b32 s{t0}, s{sH}, 7")
a(f"s_add_u32 s{t0}, s{t0}, {FLGK}")
a(f"v_lshlrev_b32 v2, 3, v{vLane}")
a(f"v_add_u32 v2, s{t0}, v2")
a(f"s_lshl_b32 s{sT}, s{sC}, 3")
a(f"s_lshl_b32 s{t0}, s{sW4}, 1")
a(f"s_add_u32 s{sT}, s{sT}, s{t0}")
a(f"s_lshl_b32 s{t0}, s{sHq2}, 6")
a(f"s_add_u32 s{t0}, s{t0}, s{sT}")
a(f"s_lshl_b32 s{t0}, s{t0}, 3")
a(f"s_add_u32 s{t0}, s{t0}, {FLGP}")
a(f"v_and_b32 v3, 1, v{vLane}")
a(f"v_lshl_add_u32 v3, v3, 3, s{t0}")
a(f"v_cmp_gt_u32 s[{t0}:{t1}], 16, v{vLane}")
a(f"v_cndmask_b32 v{vPoll}, v3, v2, s[{t0}:{t1}]")
poll(vPoll)
vKV, vPQ = 20, 84
a(f"s_lshl_b32 s{t0}, s{sH}, 16")
a(f"s_lshl_b32 s{t1}, s{sW4}, 10")
a(f"s_add_u32 s{t0}, s{t0}, s{t1}")
a(f"s_add_u32 s{t0}, s{t0}, {KVP}")
for rb in range(16):
    a(f"buffer_load_dwordx4 {vr(vKV+4*rb,4)}, v{vL16}, {sr(sWS,4)}, s{t0} offen sc1")
    if rb < 15: a(f"s_add_u32 s{t0}, s{t0}, 4096")
a(f"s_lshl_b32 s{t0}, s{sH}, 17")
a(f"s_lshl_b32 s{t1}, s{sT}, 11")
a(f"s_add_u32 s{t0}, s{t0}, s{t1}")
a(f"s_add_u32 s{t0}, s{t0}, {PHQ}")
loadn(vPQ, 4, t0)
a(f"s_lshr_b32 s{t0}, s{sW4}, 1")
a(f"s_lshl_b32 s{t0}, s{t0}, 10")
a(f"s_and_b32 s{t1}, s{sW4}, 1")
a(f"s_lshl_b32 s{t1}, s{t1}, 3")
a(f"s_add_u32 s{t0}, s{t0}, s{t1}")
a(f"v_add_u32 v2, s{t0}, v{vL16}")
a("s_waitcnt vmcnt(4)")
for st in (32, 16, 8, 4):
    for i in range(st//2): pk("add", vKV+2*i, vr(vKV+2*i,2), vr(vKV+st+2*i,2))
cvt8(vKV+4, vKV, 2)
a(f"ds_write_b64 v2, {vr(vKV+4,2)} offset:{KVX}")
a(f"s_lshl_b32 s{t0}, s{sT}, 5")
a(f"s_add_u32 s{t0}, s{t0}, s{sH}")
a(f"s_lshl_b32 s{t3}, s{t0}, 10")
a(f"s_add_u32 s{t3}, s{t3}, {OB}")
a(f"s_add_u32 s{t4}, s{t3}, 32768")
a(f"s_lshl_b32 s{sTq}, s{t0}, 3")
a(f"s_add_u32 s{sTq}, s{sTq}, {FLGOB}")
a("s_waitcnt vmcnt(0) lgkmcnt(0)")
wo_dma()
stamp(5)
a("s_barrier")
a(f"ds_read_b128 {vr(vKV,4)}, v{vL16} offset:{KVX}")
a(f"ds_read_b128 {vr(vKV+4,4)}, v{vL16} offset:{KVX+1024}")
a("s_waitcnt lgkmcnt(0)")
for u in range(2):
    D = 28 + 16*u
    a(f"{M32} {vr(D,16)}, {vr(vKV,4)}, {vr(vPQ+8*u,4)}, 0")
    a(f"{M32} {vr(D,16)}, {vr(vKV+4,4)}, {vr(vPQ+8*u+4,4)}, {vr(D,16)}")
for u in range(2):
    D = 28 + 16*u
    a(f"v_add_f32 v{D+8}, {f32(1e-6)}, v{D+8}")
    a(f"v_rcp_f32 v{D+8}, v{D+8}")
    for i in range(4): pk("mul", D+2*i, vr(D+2*i,2), vr(D+8,2), None, "op_sel:[0,0] op_sel_hi:[1,0]")
    cvt8(100+4*u, D, 4)
    a(st4(100+4*u, vL16, t3 if u == 0 else t4))
a(f"{M32} {vr(vS,16)}, {vr(vK,4)}, {vr(vQ,4)}, 0")
post_flag(sTq, 256)
wo_addr()
tail_addr()
a(f"s_mov_b32 s{sTq}, s{sWave}")
a("s_setprio 0")
a("s_barrier")
stamp(6)
for k in range(3): a(o_rd(0, k))
attention(True)
stamp(7)
a("s_setprio 2")
a("s_barrier")
stamp(8)
a(f"s_swappc_b64 {sr(sRET,2)}, {sr(sSUB,2)}")
a("s_barrier")
post_flag(t0)
a("s_setprio 0")
a(f"s_add_u32 s{t0}, s{sTe}, 4")
load_g(vG+2, t0)
tail_w()
for i in range(16): a(f"v_mov_b32 v{vAccB+i}, 0")

a.label("L_tail")
poll(15)
stamp(9)
loadn(20, 8, sRt)
a("s_waitcnt lgkmcnt(0)")
for i in range(8):
    a(f"s_waitcnt vmcnt({7-i})")
    a(f"{M32} {vr(52,16)}, {vr(100+4*i,4)}, {vr(20+4*i,4)}, {'0' if i == 0 else vr(52,16)}")
a(f"s_add_u32 s{t0}, s{sTe}, 4")
a(f"s_lshl_b32 s{t0}, s{t0}, 15")
a(f"s_add_u32 s{t0}, s{t0}, s{sN0}")
for j in range(4):
    for i in range(2): pk("fma", 52+4*j+2*i, vr(52+4*j+2*i,2), vr(vG+2,2), vr(vAccB+4*j+2*i,2), "op_sel:[0,0,0] op_sel_hi:[1,0,1]")
    a(f"ds_write_b128 v8, {vr(52+4*j,4)} offset:{j*32}")
a("s_waitcnt lgkmcnt(0)")
a("s_barrier")
stamp(10)
for k in range(4): a(f"ds_read_b128 {vr(20+4*k,4)}, v9 offset:{RED+k*4608}")
a("s_waitcnt lgkmcnt(0)")
for i in range(4): pk("add", 20+2*i, vr(20+2*i,2), vr(28+2*i,2))
for i in range(2): pk("add", 20+2*i, vr(20+2*i,2), vr(24+2*i,2))
cvt8(24, 20, 2)
a(f"buffer_store_dwordx2 {vr(24,2)}, v11, {sr(sOUT,4)}, s{t0} offen")
a(f"s_or_b32 s{t0}, s2, s{sWave}")
a(f"s_cmp_lg_u32 s{t0}, 0")
a("s_cbranch_scc1 L_noepoch")
a("s_mov_b64 exec, 1")
a(f"buffer_store_dwordx2 {vr(vTAG,2)}, v{vZERO}, {sr(sWS,4)}, 0 offen sc1")
a("s_mov_b64 exec, -1")
a.label("L_noepoch")
if DEBUG_TS:
    a("s_waitcnt vmcnt(0)")
    stamp(11)
    a(f"s_lshl_b32 s{t0}, s2, 3")
    a(f"s_add_u32 s{t0}, s{t0}, s{sWave}")
    a(f"s_lshl_b32 s{t0}, s{t0}, 6")
    a(f"s_add_u32 s{t0}, s{t0}, {TS}")
    for i in range(12): a(f"v_mov_b32 v{20+i}, s{sTS+i}")
    a("s_mov_b64 exec, 1")
    for i in range(3):
        a(f"buffer_store_dwordx4 {vr(20+4*i,4)}, v{vZERO}, {sr(sWS,4)}, s{t0} offen offset:{16*i}")
if opt("until", 0):
    a.label("L_spin2")
    a(f"s_memrealtime s[{t2}:{t3}]")
    a("s_waitcnt lgkmcnt(0)")
    a(f"s_sub_u32 s{t2}, s{t2}, s100")
    a(f"s_cmp_lt_u32 s{t2}, {opt('until', 0)}")
    a("s_cbranch_scc1 L_spin2")
a.label("L_end")
a("s_endpgm")

vR = 148
a.label("L_reduce")
a(f"s_mul_i32 s{t0}, s{sTq}, {PSLOT}")
a(f"s_add_u32 s{t0}, s{t0}, {PART}")
a(f"v_add_u32 v2, s{t0}, v{vL16}")
a(f"v_lshl_add_u32 v3, v{vLane}, 2, s{t0}")
for p in range(4):
    a(f"ds_read_b128 {vr(vR+12*p,4)}, v2 offset:{p*2304}")
    a(f"ds_read_b128 {vr(vR+12*p+4,4)}, v2 offset:{p*2304+1024}")
    a(f"ds_read_b32 v{vR+12*p+8}, v3 offset:{p*2304+2048}")
a(f"s_lshl_b32 s{t5}, s{sC}, 3")
a(f"s_add_u32 s{t5}, s{t5}, s{sTq}")
a(f"s_mov_b32 s{t2}, {f32(2.0**40)}")
a(f"s_mov_b32 s{t3}, {f32(2.0**120)}")
a("s_waitcnt lgkmcnt(6)")
for i in range(4): pk("add", vR+2*i, vr(vR+2*i,2), vr(vR+12+2*i,2))
a(f"v_add_f32 v{vR+8}, v{vR+8}, v{vR+20}")
a("s_waitcnt lgkmcnt(0)")
for i in range(4): pk("add", vR+24+2*i, vr(vR+24+2*i,2), vr(vR+36+2*i,2))
a(f"v_add_f32 v{vR+32}, v{vR+32}, v{vR+44}")
a(f"v_add_f32 v{vR+8}, v{vR+8}, v{vR+32}")
for i in range(4): pk("add", vR+2*i, vr(vR+2*i,2), vr(vR+24+2*i,2))
a(f"v_cmp_le_f32 vcc, 1.0, v{vR+8}")
a(f"v_cmp_ge_f32 s[{t0}:{t1}], s{t2}, v{vR+8}")
a(f"v_add_f32 v2, abs(v{vR}), abs(v{vR+1})")
a(f"v_add_f32 v3, abs(v{vR+2}), abs(v{vR+3})")
for i in range(4, 8): a(f"v_add_f32 v{2+(i&1)}, v{2+(i&1)}, abs(v{vR+i})")
a(f"s_and_b64 vcc, vcc, s[{t0}:{t1}]")
a(f"v_add_f32 v2, v2, v3")
a(f"v_cmp_ge_f32 s[{t0}:{t1}], s{t3}, v2")
a(f"s_and_b64 vcc, vcc, s[{t0}:{t1}]")
a(f"s_cmp_eq_u64 vcc, -1")
a("s_cbranch_scc1 L_slow" if FORCE_SLOW else "s_cbranch_scc0 L_slow")
a.label("L_norm")
a(f"v_rcp_f32 v{vR+8}, v{vR+8}")
a(f"s_lshl_b32 s{t0}, s{t5}, 5")
a(f"s_add_u32 s{t0}, s{t0}, s{sH}")
a(f"s_lshl_b32 s{t1}, s{t0}, 10")
a(f"s_add_u32 s{t2}, s{t1}, {OA}")
for i in range(4): pk("mul", vR+2*i, vr(vR+2*i,2), vr(vR+8,2), None, "op_sel:[0,0] op_sel_hi:[1,0]")
cvt8(vR+12, vR, 4)
a(st4(vR+12, vL16, t2))
a(f"s_lshl_b32 s{t0}, s{t0}, 3")
a(f"s_add_u32 s{t0}, s{t0}, {FLGO}")
a(f"s_setpc_b64 {sr(sRET,2)}")

a.label("L_codeend")
a.label("L_slow")
sQ_, sK_, sV_, sS_, sP_, sO_, sM_, sm_ = 160, 164, 168, 176, 192, 200, 216, 232
a(f"s_lshl_b32 s{t0}, s{sH}, 16")
a(f"s_lshl_b32 s{t1}, s{t5}, 10")
a(f"s_add_u32 s{t1}, s{t1}, s{t0}")
a(f"s_add_u32 s{t1}, s{t1}, {QA}")
a(f"buffer_load_dwordx4 {vr(sQ_,4)}, v{vL16}, {sr(sWS,4)}, s{t1} offen sc1")
a(f"s_add_u32 s{t1}, s{t0}, {KA}")
a(f"s_mov_b32 s{t2}, 64")
a(f"v_mov_b32 v{sm_}, 0xff7fffff")
a.label("L_slow1")
a(f"buffer_load_dwordx4 {vr(sK_,4)}, v{vL16}, {sr(sWS,4)}, s{t1} offen sc1")
a("s_waitcnt vmcnt(0)")
a(f"{M32} {vr(sS_,16)}, {vr(sK_,4)}, {vr(sQ_,4)}, 0")
for i in range(8): a(f"v_max3_f32 v{sm_}, v{sm_}, v{sS_+2*i}, v{sS_+2*i+1}")
a(f"s_add_u32 s{t1}, s{t1}, 1024")
a(f"s_sub_u32 s{t2}, s{t2}, 1")
a(f"s_cmp_lg_u32 s{t2}, 0")
a("s_cbranch_scc1 L_slow1")
a(f"v_mov_b32 v{sm_+1}, v{sm_}")
a(f"v_permlane32_swap_b32 v{sm_}, v{sm_+1}")
a(f"v_max_f32 v{sm_}, v{sm_}, v{sm_+1}")
for i in range(16): a(f"v_sub_f32 v{sM_+i}, 0, v{sm_}")
for i in range(16): a(f"v_mov_b32 v{sO_+i}, 0")
for i in range(8): a(f"v_mov_b32 v{sV_+i}, 0x3f803f80")
a(f"s_add_u32 s{t1}, s{t0}, {KA}")
a(f"s_add_u32 s{t3}, s{t0}, {VA}")
a(f"s_mov_b32 s{t2}, 64")
a.label("L_slow2")
a(f"buffer_load_dwordx4 {vr(sK_,4)}, v{vL16}, {sr(sWS,4)}, s{t1} offen sc1")
a(f"s_mov_b64 exec, {sr(sVM,2)}")
a(f"buffer_load_dwordx4 {vr(sV_,4)}, v{vVld}, {sr(sWS,4)}, s{t3} offen sc1")
a(f"buffer_load_dwordx4 {vr(sV_+4,4)}, v{vVld}, {sr(sWS,4)}, s{t3} offen offset:512 sc1")
a("s_mov_b64 exec, -1")
a("s_waitcnt vmcnt(0)")
a(f"{M32} {vr(sS_,16)}, {vr(sK_,4)}, {vr(sQ_,4)}, {vr(sM_,16)}")
for i in range(16): a(f"v_exp_f32 v{sS_+i}, v{sS_+i}")
cvt8(sP_, sS_)
a(f"{M32} {vr(sO_,16)}, {vr(sV_,4)}, {vr(sP_,4)}, {vr(sO_,16)}")
a(f"{M32} {vr(sO_,16)}, {vr(sV_+4,4)}, {vr(sP_+4,4)}, {vr(sO_,16)}")
a(f"s_add_u32 s{t1}, s{t1}, 1024")
a(f"s_add_u32 s{t3}, s{t3}, 1024")
a(f"s_sub_u32 s{t2}, s{t2}, 1")
a("s_nop 7")
a(f"s_cmp_lg_u32 s{t2}, 0")
a("s_cbranch_scc1 L_slow2")
for i in range(9): a(f"v_mov_b32 v{vR+i}, v{sO_+i}")
a("s_branch L_norm")

body, nn = a.finish(verbose="-v" in sys.argv)
hdr = open("cdna_kernels/" + NAME + ".s.ref").read().split("; Override launch")[0]
text = hdr + f"""; @launch grid=(256,1,1) block=(512,1,1) lds=163840
.amdgcn_target "amdgcn-amd-amdhsa--gfx950"
.text
.globl {NAME}_kernel
.p2align 8
.type {NAME}_kernel,@function
{NAME}_kernel:
{body}
.section .rodata,"a"
.p2align 6
.amdhsa_kernel {NAME}_kernel
  .amdhsa_next_free_vgpr 256
  .amdhsa_next_free_sgpr 102
  .amdhsa_accum_offset 256
  .amdhsa_group_segment_fixed_size 0
  .amdhsa_kernarg_size 88
  .amdhsa_user_sgpr_count 2
  .amdhsa_user_sgpr_kernarg_segment_ptr 1
  .amdhsa_system_sgpr_workgroup_id_x 1
.end_amdhsa_kernel
"""
out = [x for x in sys.argv[1:] if not x.startswith("-")]
path = out[0] if out else "cdna_kernels/" + NAME + ".s"
open(path, "w").write(text)
print("wrote", path, "nops inserted:", nn)
```

```python
import sys, struct
from asmlib import *

NAME = "gated_mix__mha_block__linear_kernel_hedgehog__prompt"
def opt(name, default):
    for x in sys.argv:
        if x.startswith(f"--{name}="): return int(x.split("=")[1])
    return default
DEBUG_TS = "--ts" in sys.argv
P1TS = "--p1" in sys.argv
LPTS = "--lp" in sys.argv
FORCE_SLOW = "--force-slow" in sys.argv
CODEPF = opt("codepf", 1)
PUBN = opt("pubn", 4)
GA = opt("ga", 3)
TOUCH2 = opt("touch2", 1)
MAP84 = opt("map84", 1)
PRO = opt("pro", 6)
DD = opt("dd", 5)
FLAG_AT = opt("flagat", 86)
P1KT = opt("p1kt", 7)
SENT = opt("sent", 1)
TOUCHWO = opt("touchwo", 0)
SENTLATE = opt("sentlate", 1)

EPOCH = 0
FLGA = 0x1000; FLGP = 0x5000; FLGK = 0x7000; FLGO = 0x9000; FLGOB = 0xD000; GW = 0x20000
QA = 0x100000; KA = 0x300000; VA = 0x500000; PHQ = 0x700000; KVP = 0xB00000
OA = 0xD00000; OB = 0xF00000; TS = 0x1200000
WS_SIZE = 0x1400000
EX = 0; KVX = 8192; PHIS = 16384; PART = 24576; PSLOT = 9216; WO = 98304
RED = PART
def wpos(p): return (p + 2) % 6

def f32(x): return "0x%08x" % struct.unpack("<I", struct.pack("<f", x))[0]
LOG2E = 1.4426950408889634
M32 = "v_mfma_f32_32x32x16_bf16"

sVM = 4
sRET = 6; sSUB = 8
sL2E2 = 10
sQS = 12
sTe, sN0, sW4, sTq = 14, 15, 16, 17
sKs, sXb, sWb, sW2off, sFl, sPub = 18, 19, 20, 21, 22, 23
sTAG = 26
sX, sWA, sWB, sWo, sWS, sPHI, sOUT, sWOA, sWOB, sG = 28, 32, 36, 40, 44, 48, 52, 56, 60, 64
sWave, sHq, sType, sRb, sRt, sCg, sH, sC, sT, sHa = 68, 69, 70, 71, 72, 73, 74, 75, 76, 77
t0, t1, t2, t3, t4, t5 = 78, 79, 80, 81, 82, 83
sXoff, sWoff, sLdsX, sLdsW = 84, 85, 86, 87
sCnt, sHq2 = 88, 89
sTS = 90
sL2E = sL2E2

a = Asm()
def tsop(): return 's_memtime' if '--cyc' in sys.argv else 's_memrealtime'
def stamp(i, mode=0):
    cur = 1 if P1TS else (2 if LPTS else 0)
    if not DEBUG_TS or (mode != cur and i not in (0, 11)): return
    a(f"{tsop()} s[24:25]")
    a("s_waitcnt lgkmcnt(0)")
    a(f"s_mov_b32 s{sTS+i}, s24")

uid = [0]
def poll(vaddr):
    n = uid[0]; uid[0] += 1
    a(f"s_mov_b32 s{sCnt}, 0x100000")
    a.label(f"L_poll{n}")
    a(f"buffer_load_dwordx2 {vr(vPair,2)}, v{vaddr}, {sr(sWS,4)}, 0 offen sc1")
    a("s_waitcnt vmcnt(0)")
    a(f"v_cmp_ne_u64 vcc, {sr(sTAG,2)}, {vr(vPair,2)}")
    a(f"s_cmp_eq_u64 vcc, 0")
    a(f"s_cbranch_scc1 L_polld{n}")
    a(f"s_sub_u32 s{sCnt}, s{sCnt}, 1")
    a(f"s_cmp_eq_u32 s{sCnt}, 0")
    a(f"s_cbranch_scc1 L_polld{n}")
    a("s_sleep 1")
    a(f"s_branch L_poll{n}")
    a.label(f"L_polld{n}")

vTAG = 250; vZERO = 252; vPair = 248; vPoll = 253
def flag_ops(soff, extra=None):
    l = ["s_waitcnt vmcnt(0)", "s_mov_b64 exec, 1",
         f"buffer_store_dwordx2 {vr(vTAG,2)}, v{vZERO}, {sr(sWS,4)}, s{soff} offen sc1"]
    if extra is not None:
        l.append(f"buffer_store_dwordx2 {vr(vTAG,2)}, v{vZERO}, {sr(sWS,4)}, s{soff} offen offset:{extra} sc1")
    l.append("s_mov_b64 exec, -1")
    return l
def post_flag(soff, extra=None):
    for x in flag_ops(soff, extra): a(x)

def cvt_s(dst, src, i): return f"v_cvt_pk_bf16_f32 v{dst+i}, v{src+2*i}, v{src+2*i+1}"
def cvt8(dst, src, n=8):
    for i in range(n): a(cvt_s(dst, src, i))
def pk_s(op, d, x, y, z=None, mods=""):
    s = f"v_pk_{op}_f32 {vr(d,2)}, {x}, {y}"
    if z is not None: s += f", {z}"
    return s + (" " + mods if mods else "")
def pk(*args): a(pk_s(*args))

vLane = 1; vL16 = 17
vPhiRaw = 4
vXa0, vXa1, vWa = 8, 9, 10
vWa1, vWa2 = 248, 249
vXr = 11; vWr = 15
vWf = 20
vAcc = 52
vI = 100; vPhi = 108
vXf = 116
vGt = 244
NW = DD + 1
assert NW <= 8

a("s_cmp_ge_u32 s2, 256")
a("s_cbranch_scc1 L_end")
if opt("until", 0): a("s_memrealtime s[100:101]")
for (d, off) in ((sX, 0), (sWA, 8), (sWB, 32), (sWS, 80), (sPHI, 40), (sWOA, 16), (sWOB, 48), (sG, 56), (sOUT, 64)):
    a(f"s_load_dwordx2 {sr(d,2)}, s[0:1], {off}")
if CODEPF:
    a(f"s_getpc_b64 s[{t0}:{t1}]")
    a.label("L_pc")
    a(f"s_lshr_b32 s{t2}, s2, 3")
    a(f"s_lshl_b32 s{t2}, s{t2}, 7")
    a(f"v_lshl_add_u32 v2, v0, 12, s{t2}")
    a("v_min_u32 v2, L_codeend-L_pc-4, v2")
    a("v_cmp_gt_u32 vcc, 16, v0")
    a(f"s_and_saveexec_b64 s[{t2}:{t3}], vcc")
    a("s_cbranch_execz L_nopf")
    a(f"global_load_dword v3, v2, s[{t0}:{t1}]")
    a.label("L_nopf")
    a("s_mov_b64 exec, -1")
a("v_lshrrev_b32 v2, 6, v0")
a(f"v_and_b32 v{vLane}, 63, v0")
a(f"v_readfirstlane_b32 s{sWave}, v2")
a(f"s_and_b32 s{sHq2}, s2, 7")
a(f"s_lshr_b32 s{t0}, s2, 3")
a(f"s_and_b32 s{sType}, s{t0}, 1")
if MAP84:
    a(f"s_bfe_u32 s{t1}, s{t0}, 0x10001")
    a(f"s_and_b32 s{sHq}, s2, 6")
    a(f"s_add_u32 s{sHq}, s{sHq}, s{t1}")
    a(f"s_and_b32 s{t1}, s2, 1")
    a(f"s_lshl_b32 s{t1}, s{t1}, 3")
    a(f"s_lshr_b32 s{sRb}, s{t0}, 2")
    a(f"s_add_u32 s{sRb}, s{sRb}, s{t1}")
    a(f"s_and_b32 s{t1}, s{t0}, 3")
    a(f"s_lshl_b32 s{t1}, s{t1}, 1")
else:
    a(f"s_mov_b32 s{sHq}, s{sHq2}")
    a(f"s_lshr_b32 s{sRb}, s{t0}, 1")
    a(f"s_lshl_b32 s{t1}, s{sType}, 2")
a(f"s_add_u32 s{sKs}, s{sRb}, s{t1}")
a(f"s_and_b32 s{sKs}, s{sKs}, 7")
a(f"v_lshrrev_b32 v2, 3, v{vLane}")
a(f"v_and_b32 v19, 7, v{vLane}")
a(f"v_bfe_u32 v18, v{vLane}, 4, 2")
a(f"v_xor_b32 v18, v18, v19")
a(f"v_lshlrev_b32 v18, 4, v18")
a(f"v_lshl_add_u32 v{vXa0}, v2, 10, v18")
a(f"v_xor_b32 v{vXa1}, 64, v{vXa0}")
a(f"v_add_u32 v{vXa1}, 7168, v{vXa1}")
a(f"v_bfe_u32 v18, v{vLane}, 4, 1")
a(f"v_lshlrev_b32 v18, 2, v18")
a(f"v_xor_b32 v18, v18, v19")
a(f"v_lshlrev_b32 v18, 4, v18")
a(f"v_mul_u32_u24 v{vWa}, 3072, v2")
a(f"v_add_u32 v{vWa}, v{vWa}, v18")
a(f"s_lshl_b32 s{t1}, s{sType}, 10")
a(f"v_add_u32 v{vWa1}, s{t1}, v{vWa}")
a(f"v_add_u32 v{vWa2}, s{t1}, v{vWa1}")
a(f"v_add_u32 v{vWa}, 1024, v{vWa1}")
a(f"s_lshl_b32 s{sXb}, s{sRb}, 17")
a(f"s_lshl_b32 s{t1}, s{sWave}, 14")
a(f"s_add_u32 s{sXb}, s{sXb}, s{t1}")
a(f"s_mul_i32 s{sWb}, s{sWave}, {8*3072}")
a(f"s_lshl_b32 s{t1}, s{sHq}, 7")
a(f"s_add_u32 s{sWb}, s{sWb}, s{t1}")
a(f"s_lshl_b32 s{t1}, s{sKs}, 7")
a(f"s_add_u32 s{sXoff}, s{sXb}, s{t1}")
a(f"s_mul_i32 s{t1}, s{sKs}, {64*3072}")
a(f"s_add_u32 s{sWoff}, s{sWb}, s{t1}")
a(f"s_lshl_b32 s{sLdsX}, s{sWave}, 11")
a(f"s_lshl_b32 s{sLdsW}, s{sWave}, 10")
a(f"s_add_u32 s{sLdsW}, s{sLdsW}, 65536")
for (d, n) in ((sX, 2048*512*2), (sWA, 512*1536*2), (sWB, 512*1536*2), (sWo, 512*1536*2)):
    a(f"s_mov_b32 s{d+2}, {n}")
    a(f"s_mov_b32 s{d+3}, 0x20000")
a(f"s_cmp_eq_u32 s{sType}, 0")
a("s_waitcnt lgkmcnt(0)")
a(f"s_cselect_b32 s{sWo}, s{sWA}, s{sWB}")
a(f"s_cselect_b32 s{sWo+1}, s{sWA+1}, s{sWB+1}")
SEGS = [(sWA, vWa), (sWo, vWa1), (sWB, vWa2)]

def dma_list():
    G = []
    nextk = [f"s_add_u32 s{sKs}, s{sKs}, 1", f"s_and_b32 s{sKs}, s{sKs}, 7"]
    nextw = [f"s_mul_i32 s{sWoff}, s{sKs}, {64*3072}", f"s_add_u32 s{sWoff}, s{sWoff}, s{sWb}"]
    def wl(p, u, seg):
        sw, va = SEGS[seg]
        return [f"s_add_u32 m0, s{sLdsW}, {wpos(p)*16384 + u*8192}", "s_nop 0",
                f"buffer_load_dwordx4 v{va}, {sr(sw,4)}, s{sWoff} offen lds"]
    for p in range(8):
        e = p - 2
        G.append((p, e, [f"s_add_u32 m0, s{sLdsX}, {(p&3)*16384}", "s_nop 0",
                         f"buffer_load_dwordx4 v{vXa0}, {sr(sX,4)}, s{sXoff} offen lds"]))
        G.append((p, e, [f"buffer_load_dwordx4 v{vXa1}, {sr(sX,4)}, s{sXoff} offen offset:1024 lds"] + nextk +
                        [f"s_lshl_b32 s{sXoff}, s{sKs}, 7", f"s_add_u32 s{sXoff}, s{sXoff}, s{sXb}"]))
        G.append((p, e, wl(p, 0, 0)))
        G.append((p, e, wl(p, 1, 1) + nextw))
    for p in range(8, 12):
        for u in range(2):
            G.append((p, p - 4, wl(p, u, 2) + nextk + nextw))
    return G

def setup1():
    a(f"s_load_dwordx2 {sr(sTAG,2)}, {sr(sWS,2)}, {EPOCH}")
    for (d, n) in ((sWS, WS_SIZE), (sPHI, 32*512), (sOUT, 2048*512*2), (sG, 1024)):
        a(f"s_mov_b32 s{d+2}, {n}")
        a(f"s_mov_b32 s{d+3}, 0x20000")
    a(f"s_and_b32 s{sRt}, s{sWave}, 3")
    a(f"s_lshr_b32 s{sCg}, s{sWave}, 2")
    a(f"s_lshl_b32 s{sHa}, s{sHq}, 2")
    a(f"s_lshl_b32 s{t1}, s{sCg}, 1")
    a(f"s_add_u32 s{sHa}, s{sHa}, s{t1}")
    a(f"v_lshlrev_b32 v{vL16}, 4, v{vLane}")
    a(f"s_lshl_b32 s{t0}, s{sHa}, 9")
    a(f"buffer_load_dwordx4 {vr(vPhiRaw,4)}, v{vL16}, {sr(sPHI,4)}, s{t0} offen")
    a(f"s_lshl_b32 s{sTq}, s2, 3")
    a(f"s_add_u32 s{sTq}, s{sTq}, s{sWave}")
    a(f"s_lshl_b32 s{t0}, s{sTq}, 10")
    a(f"buffer_load_dwordx4 {vr(vPhi,4)}, v{vL16}, {sr(sX,4)}, s{t0} offen")
    a(f"buffer_load_dwordx4 {vr(vPhi+4,4)}, v{vL16}, {sr(sG,4)}, 0 offen")

def setup2():
    a(f"s_lshr_b32 s{t0}, s2, 3")
    a(f"s_and_b32 s{t1}, s{t0}, 3")
    a(f"s_lshl_b32 s{sH}, s{sHq2}, 2")
    a(f"s_add_u32 s{sH}, s{sH}, s{t1}")
    a(f"s_lshr_b32 s{sC}, s{t0}, 2")
    a(f"s_lshl_b32 s{sTe}, s{sHq2}, 2")
    a(f"s_and_b32 s{t1}, s{t0}, 1")
    a(f"s_add_u32 s{sTe}, s{sTe}, s{t1}")
    a(f"s_lshl_b32 s{sTe}, s{sTe}, 1")
    a(f"s_and_b32 s{t1}, s{sWave}, 1")
    a(f"s_add_u32 s{sTe}, s{sTe}, s{t1}")
    a(f"s_lshr_b32 s{sN0}, s{t0}, 1")
    a(f"s_lshl_b32 s{sN0}, s{sN0}, 6")
    a(f"s_mov_b32 s{sW4}, s{sRt}")
    a(f"s_lshl_b32 s{sT}, s{sRb}, 2")
    a(f"s_add_u32 s{sT}, s{sT}, s{sRt}")
    a(f"s_lshl_b32 s{sPub}, s{sHa}, 16")
    a(f"s_lshl_b32 s{t2}, s{sT}, 10")
    a(f"s_add_u32 s{sPub}, s{sPub}, s{t2}")
    a(f"s_lshl_b32 s{sFl}, s{sHq}, 2")
    a(f"s_add_u32 s{sFl}, s{sFl}, s{sCg}")
    a(f"s_lshl_b32 s{sFl}, s{sFl}, 6")
    a(f"s_add_u32 s{sFl}, s{sFl}, s{sT}")
    a(f"s_lshl_b32 s{sFl}, s{sFl}, 3")
    a(f"s_lshl_b32 s{t2}, s{sType}, 10")
    a(f"s_add_u32 s{sFl}, s{sFl}, s{t2}")
    a(f"s_add_u32 s{sFl}, s{sFl}, {FLGA}")
    a(f"v_and_b32 v2, 31, v{vLane}")
    a(f"v_lshrrev_b32 v{vGt}, 5, v{vLane}")
    a(f"v_bfe_u32 v18, v{vLane}, 1, 3")
    a(f"v_xor_b32 v18, v18, v{vGt}")
    a(f"v_lshlrev_b32 v18, 4, v18")
    a(f"s_lshl_b32 s{t0}, s{sRt}, 12")
    a(f"v_lshl_add_u32 v18, v2, 7, v18")
    a(f"v_add_u32 v{vXr}, s{t0}, v18")
    for kk in (1, 2, 3): a(f"v_xor_b32 v{vXr+kk}, {kk*32}, v{vXr}")
    a(f"v_bfe_u32 v18, v{vLane}, 2, 2")
    a(f"v_lshl_add_u32 v18, v{vGt}, 3, v18")
    a(f"v_lshlrev_b32 v18, 7, v18")
    a(f"v_bfe_u32 v19, v{vLane}, 3, 1")
    a(f"v_xor_b32 v19, s{sCg}, v19")
    a(f"v_lshl_add_u32 v18, v19, 6, v18")
    a(f"v_bfe_u32 v19, v{vLane}, 4, 1")
    a(f"v_lshl_add_u32 v18, v19, 5, v18")
    a(f"v_and_b32 v19, 3, v{vLane}")
    a(f"v_lshl_add_u32 v18, v19, 3, v18")
    a(f"v_add_u32 v{vWr}, 65536, v18")
    a(f"v_add_u32 v{vWr+1}, 131072, v18")
    a(f"v_mov_b32 v{vZERO}, 0")
    a(f"s_mov_b32 s{sL2E2}, {f32(LOG2E)}")
    a(f"s_mov_b32 s{sL2E2+1}, {f32(LOG2E)}")
    a(f"s_mov_b32 s{sQS}, {f32(0.25*LOG2E)}")
    a(f"s_mov_b32 s{sQS+1}, {f32(0.25*LOG2E)}")
    a(f"s_mov_b32 s{sVM}, 0xffff")
    a(f"s_mov_b32 s{sVM+1}, 0xffff")
    a(f"s_bfe_u32 s{t1}, s{sH}, 0x10001")
    a(f"s_lshl_b32 s{t2}, s{sHq2}, 2")
    a(f"s_add_u32 s{t2}, s{t2}, s{t1}")
    a(f"s_lshl_b32 s{t2}, s{t2}, 9")
    a(f"s_add_u32 s{t2}, s{t2}, {FLGA}")
    a(f"s_lshl_b32 s{t3}, s{sWave}, 6")
    a(f"s_add_u32 s{t3}, s{t3}, s{t2}")
    a(f"s_lshl_b32 s{t0}, s{sC}, 6")
    a(f"s_add_u32 s{t0}, s{t0}, s{t2}")
    a(f"v_and_b32 v18, 7, v{vLane}")
    a(f"v_lshlrev_b32 v18, 3, v18")
    a(f"v_bfe_u32 v19, v{vLane}, 3, 1")
    a(f"v_lshl_add_u32 v19, v19, 10, v18")
    a(f"v_add_u32 v19, s{t3}, v19")
    a(f"v_add_u32 v18, s{t0}, v18")
    a(f"v_cmp_gt_u32 s[{t0}:{t1}], 16, v{vLane}")
    a(f"v_cndmask_b32 v{vPoll}, v18, v19, s[{t0}:{t1}]")
    a(f"v_and_b32 v19, 15, v{vLane}")
    a(f"v_lshlrev_b32 v19, 4, v19")
    a(f"v_lshl_add_u32 v255, v{vGt}, 8, v19")
    a(f"s_lshl_b32 s{t0}, s{sWave}, 10")
    a(f"s_add_u32 s{t0}, s{t0}, {PHIS}")
    a(f"v_bfe_u32 v18, v{vLane}, 2, 2")
    a(f"v_lshl_add_u32 v18, v{vGt}, 2, v18")
    a(f"v_lshlrev_b32 v18, 5, v18")
    a(f"v_and_b32 v19, 3, v{vLane}")
    a(f"v_lshl_add_u32 v18, v19, 3, v18")
    a(f"v_add_u32 v18, s{t0}, v18")
    a(f"v_bfe_u32 v19, v{vLane}, 4, 1")
    a(f"v_mul_u32_u24 v19, 0x8000, v19")
    a(f"v_lshl_or_b32 v19, v19, 16, v19")
    a(f"v_add_u32 v{vGt+3}, s{t0}, v{vL16}")
    n = uid[0]; uid[0] += 1
    a(f"s_getpc_b64 {sr(sSUB,2)}")
    a.label(f"L_pcs{n}")
    a(f"s_add_u32 s{sSUB}, s{sSUB}, L_reduce-L_pcs{n}")
    a(f"s_addc_u32 s{sSUB+1}, s{sSUB+1}, 0")
    a("s_waitcnt lgkmcnt(0)")
    a(f"s_add_u32 s{sTAG}, s{sTAG}, 0x9e3779b9")
    a(f"s_addc_u32 s{sTAG+1}, s{sTAG+1}, 0x7f4a7c15")
    a(f"v_mov_b32 v{vTAG}, s{sTAG}")
    a(f"v_mov_b32 v{vTAG+1}, s{sTAG+1}")
vVst, vVld = 254, 255
def setup_t2():
    if True:
        a(f"v_and_b32 v2, 31, v{vLane}")
        a(f"v_lshlrev_b32 v20, 2, v{vGt}")
        a(f"v_sub_u32 v20, v2, v20")
        a(f"v_mov_b32 v21, 0x3f80")
        a(f"v_mov_b32 v{vGt+1}, 0x3f800000")
        for r in range(8):
            tt = 8*((r & 3) >> 1) + 2*(r & 1) + 16*(r >> 2)
            a(f"v_cmp_eq_u32 s[{t0}:{t1}], {tt}, v20")
            a(f"v_cmp_eq_u32 s[{t2}:{t3}], {tt+1}, v20")
            a(f"v_cndmask_b32 v{vI+r}, 0, v21, s[{t0}:{t1}]")
            a(f"v_cndmask_b32 v{vI+r}, v{vI+r}, v{vGt+1}, s[{t2}:{t3}]")
        a(f"v_bfe_u32 v20, v{vLane}, 4, 1")
        a(f"v_lshlrev_b32 v20, 16, v20")
        a(f"v_lshl_add_u32 v20, v{vGt}, 8, v20")
        a(f"v_and_b32 v21, 15, v{vLane}")
        a(f"v_lshl_add_u32 v254, v21, 4, v20")


def gate_ops():
    x, w, g0, g1 = vPhi, vPhi+4, vGt, vGt+1
    g = [[f"v_dot2_f32_bf16 v{g0}, v{x}, v{w}, 0", f"v_dot2_f32_bf16 v{g1}, v{x+1}, v{w+1}, 0"],
         [f"v_dot2_f32_bf16 v{g0}, v{x+2}, v{w+2}, v{g0}", f"v_dot2_f32_bf16 v{g1}, v{x+3}, v{w+3}, v{g1}"],
         [f"s_lshl_b32 s{sTq}, s{sTq}, 2", f"s_add_u32 s{sTq}, s{sTq}, {GW}"],
         [f"v_add_f32 v{g0}, v{g0}, v{g1}"]]
    for m in ("quad_perm:[1,0,3,2]", "quad_perm:[2,3,0,1]", "row_half_mirror", "row_mirror"):
        g.append([f"v_add_f32_dpp v{g0}, v{g0}, v{g0} {m} row_mask:0xf bank_mask:0xf"])
    g.append([f"v_mov_b32 v{g1}, v{g0}"])
    g.append([f"v_permlane16_swap_b32 v{g0}, v{g1}"])
    g.append([f"v_add_f32 v{g0}, v{g0}, v{g1}", f"v_mov_b32 v{g1}, v{g0}"])
    g.append([f"v_permlane32_swap_b32 v{g0}, v{g1}"])
    g.append([f"v_add_f32 v{g0}, v{g0}, v{g1}", f"v_mul_f32 v{g0}, s{sL2E}, v{g0}"])
    g.append([f"v_exp_f32 v{g0}, -v{g0}"])
    g.append([f"v_add_f32 v{g0}, 1.0, v{g0}"])
    g.append([f"v_rcp_f32 v{g0}, v{g0}"])
    return g
def gate_store():
    return ["s_mov_b64 exec, 1", f"buffer_store_dword v{vGt}, v{vZERO}, {sr(sWS,4)}, s{sTq} offen sc1", "s_mov_b64 exec, -1"]

def prologue():
    G = dma_list()
    stamp(0)
    for g in G[:4]:
        for x in g[2]: a(x)
    setup1()
    for g in G[4:PRO]:
        for x in g[2]: a(x)
    if TOUCH2:
        assert PRO == 6
        a(f"s_sub_u32 s{t0}, s{sKs}, 2")
        a(f"s_and_b32 s{t0}, s{t0}, 7")
        a(f"s_mul_i32 s{t0}, s{t0}, {64*3072}")
        a(f"s_add_u32 s{t0}, s{t0}, s{sWb}")
        a(f"buffer_load_dword v{vGt+2}, v{vWa2}, {sr(sWB,4)}, s{t0} offen")
    setup2()

def gemm(vtype, pub_ops):
    G = dma_list()
    upto = {}
    for i, (p, e, _) in enumerate(G): upto[p] = i + 1
    ng = [PRO]
    def issue(n):
        for _ in range(n):
            for x in G[ng[0]][2]: a(x)
            ng[0] += 1
    MF = []
    def wr(m, p, off):
        pos = wpos(p)
        return [f"ds_read_b64_tr_b16 {vr(vWf+4*(m%NW)+2*sec,2)}, v{vWr+(pos>>2)} offset:{(pos&3)*16384+off+sec*512}" for sec in range(2)]
    for i in range(32):
        p, kk = i >> 2, i & 3
        for seg in range(2):
            r = []
            if seg == 0: r.append(f"ds_read_b128 {vr(vXf+4*i,4)}, v{vXr+kk} offset:{(p&3)*16384}")
            r += wr(len(MF), p, seg*8192 + kk*2048)
            MF.append((p, i, seg, r))
    for i in range(32):
        p = 8 + (i >> 3)
        MF.append((p, i, 2, wr(len(MF), p, ((i >> 2) & 1)*8192 + (i & 3)*2048)))
    a(f"s_waitcnt vmcnt({PRO-4+3+TOUCH2})")
    a("s_barrier")
    stamp(1, 1)
    for m in range(DD):
        for x in MF[m][3]: a(x)
    vis = 0
    nst = [0]
    gops = gate_ops()
    pops = list(pub_ops) + [gate_store()]
    wo = [f"s_cmp_ge_u32 s{sW4}, 2", f"s_cselect_b32 s{sWo}, s{sWOA}, s{sWOB}", f"s_cselect_b32 s{sWo+1}, s{sWOA+1}, s{sWOB+1}",
          f"s_mov_b32 s{sWo+2}, {512*512*2}"]
    if TOUCHWO:
        wo += [f"s_and_b32 s{t0}, s{sW4}, 1", f"s_lshl_b32 s{t0}, s{t0}, 1", f"s_add_u32 s{t0}, s{t0}, s{sCg}", f"s_lshl_b32 s{t0}, s{t0}, 12",
               f"s_lshr_b32 s{t1}, s2, 3", f"s_lshl_b32 s{t1}, s{t1}, 14", f"s_add_u32 s{t0}, s{t0}, s{t1}",
               f"v_lshlrev_b32 v2, 6, v{vLane}", f"buffer_load_dword v{vGt+2}, v2, {sr(sWo,4)}, s{t0} offen"]
    wo_done = [False]
    for m in range(96):
        nx = m + DD
        if nx < 96 and MF[nx][0] != vis:
            vis = MF[nx][0]
            assert ng[0] >= upto[vis], (m, ng[0])
            a(f"s_waitcnt vmcnt({ng[0] - upto[vis] + nst[0]})")
            a("s_barrier")
            if vis in (1, 2, 4, 6, 8, 9, 10, 11): stamp({1: 2, 2: 3, 4: 4, 6: 5, 8: 6, 9: 7, 10: 8, 11: 9}[vis], 1)
        later = sum(len(MF[k][3]) for k in range(m+1, min(nx, 96)))
        assert later <= 15
        a(f"s_waitcnt lgkmcnt({later})")
        p, i, seg, _ = MF[m]
        x = vr(vXf+4*i, 4); w = vr(vWf+4*(m % NW), 4); d = vr(vAcc+16*seg, 16)
        c = "0" if i == 0 else d
        if vtype[seg]: a(f"{M32} {d}, {x}, {w}, {c}")
        else: a(f"{M32} {d}, {w}, {x}, {c}")
        if nx < 96:
            for x in MF[nx][3]: a(x)
        if ng[0] < len(G) and G[ng[0]][1] <= vis: issue(1)
        elif vis >= 1 and gops:
            for x in gops.pop(0): a(x)
        if ng[0] == len(G) and not wo_done[0] and m >= 62:
            for x in wo: a(x)
            if TOUCHWO: nst[0] += 1
            wo_done[0] = True
        if m >= 65 and pops:
            assert ng[0] == len(G) and not gops
            for x in pops.pop(0):
                a(x)
                if x.startswith("buffer_store"): nst[0] += 1
    stamp(10, 1)
    stamp(1)

def wphi_stage():
    a(f"ds_write_b128 v{vGt+3}, {vr(vPhiRaw,4)}")
    a("s_waitcnt lgkmcnt(0)")
    for u in range(2):
        for sec in range(2):
            a(f"ds_read_b64_tr_b16 {vr(vPhi+4*u+2*sec,2)}, v18 offset:{u*512+sec*256}")
def wphi_sign():
    a("s_waitcnt lgkmcnt(0)")
    for i in range(8): a(f"v_xor_b32 v{vPhi+i}, v19, v{vPhi+i}")

def dual_softmax(D, PH, tmp):
    mp, mn = tmp, tmp+1
    H = ((mp, 0), (mn, 8))
    for (m, o) in H: a(f"v_max3_f32 v{m}, v{D+o}, v{D+o+1}, v{D+o+2}")
    for (m, o) in H: a(f"v_max3_f32 v{m}, v{m}, v{D+o+3}, v{D+o+4}")
    for (m, o) in H: a(f"v_max3_f32 v{m}, v{m}, v{D+o+5}, v{D+o+6}")
    for (m, o) in H: a(f"v_max_f32 v{m}, v{m}, v{D+o+7}")
    a(f"v_permlane32_swap_b32 v{mp}, v{mn}")
    a(f"v_max_f32 v{mp}, v{mp}, v{mn}")
    a(f"v_mul_f32 v{mp}, s{sL2E}, v{mp}")
    a(f"v_mov_b32 v{mn}, v{mp}")
    a(f"v_permlane32_swap_b32 v{mp}, v{mn}")
    for i in range(8):
        hi = 1 if i >= 4 else 0
        pk("fma", D+2*i, vr(D+2*i,2), sr(sL2E2,2), vr(mp,2), f"op_sel:[0,0,{hi}] op_sel_hi:[1,1,{hi}] neg_lo:[0,0,1] neg_hi:[0,0,1]")
    for i in range(16): a(f"v_exp_f32 v{D+i}, v{D+i}")
    s1, s2 = tmp+2, tmp+4
    for (s, o) in ((s1, 0), (s2, 8)): pk("add", s, vr(D+o,2), vr(D+o+2,2))
    for (s, o) in ((s1, 0), (s2, 8)): pk("add", s, vr(s,2), vr(D+o+4,2))
    for (s, o) in ((s1, 0), (s2, 8)): pk("add", s, vr(s,2), vr(D+o+6,2))
    a(f"v_add_f32 v{mp}, v{s1}, v{s1+1}")
    a(f"v_add_f32 v{mn}, v{s2}, v{s2+1}")
    a(f"v_permlane32_swap_b32 v{mp}, v{mn}")
    a(f"v_add_f32 v{mp}, v{mp}, v{mn}")
    a(f"v_rcp_f32 v{mp}, v{mp}")
    a(f"v_mov_b32 v{mn}, v{mp}")
    a(f"v_permlane32_swap_b32 v{mp}, v{mn}")
    for i in range(8):
        hi = 1 if i >= 4 else 0
        pk("mul", D+2*i, vr(D+2*i,2), vr(mp,2), None, f"op_sel:[0,{hi}] op_sel_hi:[1,{hi}]")
    cvt8(PH, D)

vK, vV, vQ = 116, 148, 212
vS, vP, vO = 20, 52, 60
sK0, sK1, sV0, sV1, sQ0, sQ1 = sXoff, sWoff, sLdsX, sLdsW, sKs, sXb
def kvq_prep():
    a(f"v_and_b32 v2, 27, v{vLane}")
    a(f"v_cmp_eq_u32 s[{t0}:{t1}], 16, v2")
    a(f"v_mov_b32 v3, 0x3f803f80")
    a(f"v_cndmask_b32 v{vV}, 0, v3, s[{t0}:{t1}]")
    a(f"v_mov_b32 v{vV+1}, v{vV}")
    for i in range(1, 32): a(f"v_pk_mov_b32 {vr(vV+2*i,2)}, {vr(vV,2)}, {vr(vV,2)}")
    a(f"s_lshl_b32 s{t1}, s{sH}, 16")
    a(f"s_lshl_b32 s{t2}, s{sC}, 13")
    a(f"s_add_u32 s{sQ0}, s{t1}, s{t2}")
    a(f"s_add_u32 s{sQ0}, s{sQ0}, {QA}")
    a(f"s_add_u32 s{sQ1}, s{sQ0}, 4096")
    a(f"s_lshl_b32 s{t2}, s{sWave}, 13")
    a(f"s_add_u32 s{t1}, s{t1}, s{t2}")
    a(f"s_add_u32 s{sK0}, s{t1}, {KA}")
    a(f"s_add_u32 s{sV0}, s{t1}, {VA}")
    a(f"s_add_u32 s{sK1}, s{sK0}, 4096")
    a(f"s_add_u32 s{sV1}, s{sV0}, 4096")
def ldK(kt): a(f"buffer_load_dwordx4 {vr(vK+4*kt,4)}, v{vL16}, {sr(sWS,4)}, s{sK0 if kt < 4 else sK1} offen offset:{(kt&3)*1024} sc1")
def ldQ(t): a(f"buffer_load_dwordx4 {vr(vQ+4*t,4)}, v{vL16}, {sr(sWS,4)}, s{sQ0 if t < 4 else sQ1} offen offset:{(t&3)*1024} sc1")
def ldV(kt):
    a(f"s_mov_b64 exec, {sr(sVM,2)}")
    for m in range(2):
        a(f"buffer_load_dwordx4 {vr(vV+8*kt+4*m,4)}, v{vVld}, {sr(sWS,4)}, s{sV0 if kt < 4 else sV1} offen offset:{(kt&3)*1024+m*512} sc1")
    a("s_mov_b64 exec, -1")
def ldG(g):
    if g < 8:
        ldV(g)
        if g < 7: ldK(g+1)
        else: ldQ(1)
    else:
        for t in range(2 + 3*(g-8), 5 + 3*(g-8)): ldQ(t)

def if_group(isY, fn):
    n = uid[0]; uid[0] += 1
    a(f"s_cmp_ge_u32 s{sWave}, 4")
    a(f"s_cbranch_scc{0 if isY else 1} L_g{n}")
    fn()
    a.label(f"L_g{n}")
def after_gemm():
    wphi_stage()
    a("s_setprio 2")
    a("s_nop 2")
    def y():
        post_flag(sFl)
        stamp(2)
        a("s_setprio 1")
    if_group(True, y)
def x_flag():
    def x():
        post_flag(sFl)
        stamp(2)
    if_group(False, x)

vTmp = 8
def grp(l, n): return [l[i:i+n] for i in range(0, len(l), n)]
st4 = lambda r, va, so, off=0: f"buffer_store_dwordx4 {vr(r,4)}, v{va}, {sr(sWS,4)}, s{so} offen" + (f" offset:{off}" if off else "") + " sc1"
pub = grp([cvt_s(vAcc, vAcc, i) for i in range(8)], PUBN)
pub += [[f"s_add_u32 s{t2}, s{sPub}, {KA}", f"s_add_u32 s{t3}, s{sPub}, {KA+65536}", st4(vAcc, vL16, t2)], [st4(vAcc+4, vL16, t3)]]
pub += grp([pk_s("mul", vAcc+16+2*i, vr(vAcc+16+2*i,2), sr(sQS,2)) for i in range(8)] + [cvt_s(vAcc+16, vAcc+16, i) for i in range(8)], PUBN)
pub += [[f"s_add_u32 s{t2}, s{sPub}, {QA}", f"s_add_u32 s{t3}, s{sPub}, {QA+65536}", st4(vAcc+16, vL16, t2)], [st4(vAcc+20, vL16, t3)]]
prologue()
a(f"s_cmp_eq_u32 s{sType}, 0")
a("s_cbranch_scc0 L_type2")
gemm([False, False, False], pub)
after_gemm()
cvt8(20, vAcc+32)
wphi_sign()
for u in range(2):
    a(f"{M32} {vr(52+16*u,16)}, {vr(vPhi+4*u,4)}, {vr(20+4*u,4)}, 0")
a(f"s_lshl_b32 s{t0}, s{sRt}, 14")
a(f"s_lshl_b32 s{t1}, s{sCg}, 12")
a(f"s_add_u32 s{t0}, s{t0}, s{t1}")
a(f"s_add_u32 s{t0}, s{t0}, {WO}")
a(f"v_add_u32 v2, s{t0}, v{vL16}")
dual_softmax(52, 28, vTmp)
x_flag()
for q in range(2): a(f"ds_write_b128 v2, {vr(28+4*q,4)} offset:{q*1024}")
dual_softmax(68, 36, vTmp)
for q in range(2, 4): a(f"ds_write_b128 v2, {vr(28+4*q,4)} offset:{q*1024}")
a("s_branch L_p1done")

a.label("L_type2")
pub = grp([cvt_s(vAcc, vAcc, i) for i in range(8)], PUBN)
pub += [[f"s_add_u32 s{t2}, s{sPub}, {VA}", st4(vAcc, vVst, t2)], [st4(vAcc+4, vVst, t2, 512)]]
pub += grp([cvt_s(vAcc+16, vAcc+16, i) for i in range(8)], PUBN)
setup_t2()
gemm([True, False, True], pub)
after_gemm()
wphi_sign()
for u in range(2):
    a(f"{M32} {vr(20+16*u,16)}, {vr(vPhi+4*u,4)}, {vr(68+4*u,4)}, 0")
cvt8(84, 84)
for i in range(8): a(f"v_mov_b32 v{92+i}, 0x3f803f80")
for i in range(8): a(f"v_permlane16_swap_b32 v{84+i}, v{92+i}")
dual_softmax(20, 52, vTmp)
x_flag()
a(f"{M32} {vr(20,16)}, {vr(52,4)}, {vr(vI,4)}, 0")
a(f"{M32} {vr(20,16)}, {vr(56,4)}, {vr(vI+4,4)}, {vr(20,16)}")
dual_softmax(36, 60, vTmp)
a(f"{M32} {vr(36,16)}, {vr(60,4)}, {vr(vI,4)}, 0")
a(f"{M32} {vr(36,16)}, {vr(64,4)}, {vr(vI+4,4)}, {vr(36,16)}")
cvt8(52, 20)
a(f"{M32} {vr(68,16)}, {vr(52,4)}, {vr(84,4)}, 0")
a(f"{M32} {vr(68,16)}, {vr(56,4)}, {vr(88,4)}, {vr(68,16)}")
cvt8(60, 36)
a(f"{M32} {vr(20,16)}, {vr(60,4)}, {vr(92,4)}, 0")
a(f"{M32} {vr(20,16)}, {vr(64,4)}, {vr(96,4)}, {vr(20,16)}")
a(f"s_lshl_b32 s{t0}, s{sCg}, 15")
a(f"s_lshl_b32 s{t1}, s{sRt}, 12")
a(f"s_add_u32 s{t0}, s{t0}, s{t1}")
a(f"s_add_u32 s{t0}, s{t0}, {WO}")
a(f"v_add_u32 v2, s{t0}, v{vL16}")
for u in range(2):
    for q in range(4):
        a(f"ds_write_b128 v2, {vr((68, 20)[u]+4*q,4)} offset:{u*16384+q*1024}")

a.label("L_p1done")
vOw0, vOw1, vOw2 = 4, 5, 6
a(f"s_mul_i32 s{t0}, s{sW4}, 2304")
a(f"s_add_u32 s{t0}, s{t0}, {PART}")
a(f"v_add_u32 v{vOw0}, s{t0}, v{vL16}")
a(f"v_add_u32 v{vOw1}, 1024, v{vOw0}")
a(f"s_add_u32 s{t0}, s{t0}, 2048")
a(f"v_lshl_add_u32 v{vOw2}, v{vLane}, 2, s{t0}")

def o_wr(t, k):
    O = vO + 16*(t & 1)
    return [f"ds_write_b128 v{vOw0}, {vr(O,4)} offset:{t*PSLOT}", f"ds_write_b128 v{vOw1}, {vr(O+4,4)} offset:{t*PSLOT}",
            f"ds_write_b32 v{vOw2}, v{O+8} offset:{t*PSLOT}"][k]
def o_rd(t, k):
    O = vO + 16*(t & 1)
    return [f"ds_read_b128 {vr(O,4)}, v{vOw0} offset:{t*PSLOT}", f"ds_read_b128 {vr(O+4,4)}, v{vOw1} offset:{t*PSLOT}",
            f"ds_read_b32 v{O+8}, v{vOw2} offset:{t*PSLOT}"][k]

def attention(isY):
    stamp(2, 2)
    for n in range(64):
        t, kt = n >> 3, n & 7
        S = vS + 16*(n & 1); Sn = vS + 16*((n+1) & 1)
        O = vO + 16*(t & 1)
        Op = O if kt > 0 else vO + 16*((t & 1) ^ 1)
        e = lambda i: a(f"v_exp_f32 v{S+i}, v{S+i}")
        c = lambda j: a(f"v_cvt_pk_bf16_f32 v{vP+j}, v{S+2*j}, v{S+2*j+1}")
        e(0); e(1)
        if n > 0: a(f"{M32} {vr(Op,16)}, {vr(vV+8*((kt-1)&7)+4,4)}, {vr(vP+4,4)}, {vr(Op,16)}")
        if isY and t < 7 and kt in (5, 6): a(o_rd(t+1, kt-4))
        if (not isY and (t, kt) == (0, P1KT)) or (isY and (t, kt) == (4, 4)):
            a("s_waitcnt lgkmcnt(0)")
            a("s_barrier")
        e(2); e(3); c(0); e(4); e(5); c(1); e(6); e(7); c(2)
        if not isY and t == 0: a(f"s_waitcnt vmcnt({3*(min(kt+GA-1, 9) - kt)})")
        if not isY and t == 1 and kt == 7: a("s_waitcnt vmcnt(0)")
        if n < 63: a(f"{M32} {vr(Sn,16)}, {vr(vK+4*((kt+1)&7),4)}, {vr(vQ+4*((n+1)>>3),4)}, 0")
        if not isY and n + GA <= 9: ldG(n + GA)
        if isY and kt == 0: a("s_waitcnt lgkmcnt(0)")
        e(8); c(3); e(9); e(10)
        a(f"{M32} {vr(O,16)}, {vr(vV+8*kt,4)}, {vr(vP,4)}, {'0' if (kt == 0 and not isY) else vr(O,16)}")
        if t > 0 and kt in (1, 2, 3): a(o_wr(t-1, kt-1))
        if isY and t < 7 and kt == 4: a(o_rd(t+1, 0))
        e(11); c(4); e(12); e(13); c(5); e(14); e(15); c(6); c(7)
        if kt == 7: stamp(3+t, 2)
    a(f"{M32} {vr(vO+16,16)}, {vr(vV+8*7+4,4)}, {vr(vP+4,4)}, {vr(vO+16,16)}")
    for k in range(3): a(o_wr(7, k))
    a("s_waitcnt lgkmcnt(0)")

def wo_dma():
    a(f"v_lshrrev_b32 v2, 2, v{vLane}")
    a(f"v_and_b32 v3, 3, v{vLane}")
    a(f"v_lshlrev_b32 v3, 4, v3")
    a(f"v_lshl_add_u32 v18, v2, 10, v3")
    a(f"s_and_b32 s{t0}, s{sW4}, 1")
    a(f"s_lshl_b32 s{t0}, s{t0}, 18")
    a(f"s_add_u32 s{t0}, s{t0}, s{sN0}")
    a(f"s_lshl_b32 s{t1}, s{sW4}, 14")
    a(f"s_add_u32 s{t1}, s{t1}, {WO}")
    a(f"s_mov_b32 s{t2}, 16")
    a.label(f"L_wo")
    a(f"s_mov_b32 m0, s{t1}")
    a(f"s_add_u32 s{t1}, s{t1}, 1024")
    a(f"buffer_load_dwordx4 v18, {sr(sWo,4)}, s{t0} offen lds")
    a(f"s_add_u32 s{t0}, s{t0}, 16384")
    a(f"s_sub_u32 s{t2}, s{t2}, 1")
    a(f"s_cmp_lg_u32 s{t2}, 0")
    a(f"s_cbranch_scc1 L_wo")

vWoA = 7
def wo_addr():
    a(f"v_lshrrev_b32 v3, 5, v{vLane}")
    a(f"v_bfe_u32 v18, v{vLane}, 2, 2")
    a(f"v_lshl_add_u32 v18, v3, 2, v18")
    a(f"v_lshlrev_b32 v18, 6, v18")
    a(f"v_bfe_u32 v19, v{vLane}, 4, 1")
    a(f"v_lshl_add_u32 v18, v19, 5, v18")
    a(f"v_and_b32 v19, 3, v{vLane}")
    a(f"v_lshl_add_u32 v18, v19, 3, v18")
    a(f"v_add_u32 v{vWoA}, {WO}, v18")

vFB, vFA, vAccA, vW3, vG, vAccB = 20, 148, 212, 228, 240, 148
def loadn(dst, n, soff):
    for i in range(n):
        a(f"buffer_load_dwordx4 {vr(dst+4*i,4)}, v{vL16}, {sr(sWS,4)}, s{soff} offen offset:{(i&3)*1024} sc1")
        if (i & 3) == 3 and i < n-1: a(f"s_add_u32 s{soff}, s{soff}, 4096")
def proj(acc, frag, n, vaddr, pre=None):
    def rd(i):
        for sec in range(2):
            a(f"ds_read_b64_tr_b16 {vr(vW3+4*(i%3)+2*sec,2)}, v{vaddr} offset:{i*1024+sec*512}")
    rd(0); rd(1)
    if pre: pre()
    for i in range(n):
        if i + 2 < n: rd(i+2)
        a(f"s_waitcnt lgkmcnt({2*min(2, n-1-i)})")
        a(f"{M32} {vr(acc,16)}, {vr(vW3+4*(i%3),4)}, {vr(frag+4*i,4)}, {'0' if i == 0 else vr(acc,16)}")
def load_g(dst, stile):
    a(f"s_lshl_b32 s{t1}, s{stile}, 7")
    a(f"s_add_u32 s{t1}, s{t1}, {GW}")
    a(f"buffer_load_dword v{dst}, v14, {sr(sWS,4)}, s{t1} offen sc1")

def tail_addr():
    a(f"s_lshr_b32 s{sCg}, s{sWave}, 1")
    a(f"s_lshl_b32 s{t0}, s{sCg}, 13")
    a(f"s_add_u32 s{t0}, s{t0}, 32768")
    a(f"v_add_u32 v12, s{t0}, v{vWoA}")
    a(f"s_add_u32 s{t0}, s{sTe}, 4")
    a(f"s_lshl_b32 s{t0}, s{t0}, 5")
    a(f"s_lshl_b32 s{t1}, s{sCg}, 3")
    a(f"s_add_u32 s{sRt}, s{t0}, s{t1}")
    a(f"s_lshl_b32 s{t0}, s{sRt}, 3")
    a(f"s_add_u32 s{t0}, s{t0}, {FLGO}")
    a(f"v_and_b32 v2, 7, v{vLane}")
    a(f"v_lshl_add_u32 v15, v2, 3, s{t0}")
    a(f"s_lshl_b32 s{sRt}, s{sRt}, 10")
    a(f"s_add_u32 s{sRt}, s{sRt}, {OA}")
    a(f"v_and_b32 v2, 31, v{vLane}")
    a(f"v_lshlrev_b32 v14, 2, v2")
    a(f"v_mul_u32_u24 v2, 144, v2")
    a(f"v_lshrrev_b32 v3, 5, v{vLane}")
    a(f"v_lshl_add_u32 v2, v3, 4, v2")
    a(f"s_and_b32 s{t0}, s{sWave}, 1")
    a(f"s_lshl_b32 s{t0}, s{t0}, 2")
    a(f"s_add_u32 s{t0}, s{t0}, s{sCg}")
    a(f"s_mul_i32 s{t0}, s{t0}, 4608")
    a(f"s_add_u32 s{t0}, s{t0}, {RED}")
    a(f"v_add_u32 v8, s{t0}, v2")
    a(f"v_lshrrev_b32 v2, 3, v{vLane}")
    a(f"s_lshl_b32 s{t0}, s{sCg}, 3")
    a(f"v_add_u32 v2, s{t0}, v2")
    a(f"v_and_b32 v3, 7, v{vLane}")
    a(f"v_mul_u32_u24 v9, 144, v2")
    a(f"v_lshl_add_u32 v9, v3, 4, v9")
    a(f"s_and_b32 s{t0}, s{sWave}, 1")
    a(f"s_mul_i32 s{t0}, s{t0}, {4*4608}")
    a(f"v_add_u32 v9, s{t0}, v9")
    a(f"v_lshlrev_b32 v11, 10, v2")
    a(f"v_lshl_add_u32 v11, v3, 3, v11")
def tail_w():
    for i in range(8):
        for sec in range(2):
            a(f"ds_read_b64_tr_b16 {vr(100+4*i+2*sec,2)}, v12 offset:{i*1024+sec*512}")
        if i == 3: a("s_waitcnt lgkmcnt(4)")

a(f"s_cmp_ge_u32 s{sWave}, 4")
a("s_cbranch_scc1 L_Y")
kvq_prep()
stamp(3)
poll(vPoll)
stamp(4)
ldQ(0); ldK(0)
for g in range(GA): ldG(g)
a(f"s_waitcnt vmcnt({3*GA}) lgkmcnt(0)")
a("s_setprio 0")
a(f"{M32} {vr(vS,16)}, {vr(vK,4)}, {vr(vQ,4)}, 0")
stamp(5)
attention(False)
a("s_barrier")
stamp(6)
a("s_setprio 1")
vKV, vPQ = 20, 84
a(f"s_lshl_b32 s{sT}, s{sC}, 3")
a(f"s_lshl_b32 s{t0}, s{sW4}, 1")
a(f"s_add_u32 s{sT}, s{sT}, s{t0}")
a(f"s_lshl_b32 s{t0}, s{sH}, 17")
a(f"s_lshl_b32 s{t1}, s{sT}, 11")
a(f"s_add_u32 s{t0}, s{t0}, s{t1}")
a(f"s_add_u32 s{t0}, s{t0}, {PHQ}")
loadn(vPQ, 4, t0)
a(f"ds_read_b128 {vr(vKV,4)}, v{vL16} offset:{KVX}")
a(f"ds_read_b128 {vr(vKV+4,4)}, v{vL16} offset:{KVX+1024}")
a(f"s_lshl_b32 s{t0}, s{sT}, 5")
a(f"s_add_u32 s{t0}, s{t0}, s{sH}")
a(f"s_lshl_b32 s{t3}, s{t0}, 10")
a(f"s_add_u32 s{t3}, s{t3}, {OB}")
a(f"s_add_u32 s{t4}, s{t3}, 32768")
a(f"s_lshl_b32 s{sTq}, s{t0}, 3")
a(f"s_add_u32 s{sTq}, s{sTq}, {FLGOB}")
a("s_waitcnt vmcnt(0) lgkmcnt(0)")
for u in range(2):
    D = 28 + 16*u
    a(f"{M32} {vr(D,16)}, {vr(vKV,4)}, {vr(vPQ+8*u,4)}, 0")
    a(f"{M32} {vr(D,16)}, {vr(vKV+4,4)}, {vr(vPQ+8*u+4,4)}, {vr(D,16)}")
for u in range(2):
    D = 28 + 16*u
    a(f"v_add_f32 v{D+8}, {f32(1e-6)}, v{D+8}")
    a(f"v_rcp_f32 v{D+8}, v{D+8}")
    for i in range(4): pk("mul", D+2*i, vr(D+2*i,2), vr(D+8,2), None, "op_sel:[0,0] op_sel_hi:[1,0]")
    cvt8(100+4*u, D, 4)
    a(st4(100+4*u, vL16, t3 if u == 0 else t4))
wo_addr()
tail_addr()
post_flag(sTq, 256)
a(f"s_lshl_b32 s{sT}, s{sCg}, 2")
a(f"s_add_u32 s{sT}, s{sT}, s{sTe}")
a(f"s_lshl_b32 s{t0}, s{sT}, 8")
a(f"s_add_u32 s{t0}, s{t0}, {FLGOB}")
a(f"v_and_b32 v2, 31, v{vLane}")
a(f"v_lshl_add_u32 v{vPoll}, v2, 3, s{t0}")
poll(vPoll)
a(f"s_lshl_b32 s{t0}, s{sT}, 15")
a(f"s_add_u32 s{t0}, s{t0}, {OB}")
loadn(vFB, 32, t0)
load_g(vG, sTe)
load_g(vG+1, sT)
a(f"s_add_u32 s{t0}, s{sTe}, 4")
load_g(vG+2, t0)
a(f"s_lshl_b32 s{t0}, s{sCg}, 14")
a(f"s_add_u32 s{t0}, s{t0}, 32768")
a(f"v_add_u32 v13, s{t0}, v{vWoA}")
a(f"s_lshl_b32 s{sT}, s{sTe}, 5")
a(f"s_lshl_b32 s{t0}, s{sCg}, 4")
a(f"s_add_u32 s{sT}, s{sT}, s{t0}")
a(f"s_lshl_b32 s{t0}, s{sT}, 3")
a(f"s_add_u32 s{t0}, s{t0}, {FLGO}")
a(f"v_and_b32 v2, 15, v{vLane}")
a(f"v_lshl_add_u32 v{vPoll}, v2, 3, s{t0}")
a(f"s_lshl_b32 s{sT}, s{sT}, 10")
a(f"s_add_u32 s{sT}, s{sT}, {OA}")
a(f"s_mov_b32 s{sTq}, s{sWave}")
a("s_barrier")
a(f"s_swappc_b64 {sr(sRET,2)}, {sr(sSUB,2)}")
post_flag(t0)
poll(vPoll)
loadn(vFA, 16, sT)
a(f"v_sub_f32 v{vG+1}, 1.0, v{vG+1}")
a(f"s_and_b32 s{t0}, s{sWave}, 1")
a(f"s_lshl_b32 s{t0}, s{t0}, 12")
a(f"v_add_u32 v10, s{t0}, v{vL16}")
a(f"v_and_b32 v2, 31, v{vLane}")
a(f"v_lshlrev_b32 v2, 10, v2")
a(f"v_lshrrev_b32 v3, 5, v{vLane}")
a(f"v_lshl_add_u32 v16, v3, 4, v2")
a(f"s_lshl_b32 s{sT}, s{sTe}, 15")
a(f"s_add_u32 s{sT}, s{sT}, s{sN0}")
def pre_delta():
    a("s_waitcnt vmcnt(0)")
    stamp(7)
    a("s_barrier")
    stamp(8)
proj(vAccA, vFA, 16, 13, pre_delta)
a(f"s_cmp_ge_u32 s{sWave}, 2")
a("s_cbranch_scc0 L_Xnw")
a("s_nop 9")
for j in range(4): a(f"ds_write_b128 v10, {vr(vAccA+4*j,4)} offset:{EX+j*1024}")
a.label("L_Xnw")
def pre_e():
    a("s_waitcnt lgkmcnt(4)")
    a("s_barrier")
proj(vAccB, vFB, 32, vWoA, pre_e)
a(f"s_cmp_ge_u32 s{sWave}, 2")
a("s_cbranch_scc0 L_Xearly")
tail_w()
for i in range(8): pk("mul", vAccB+2*i, vr(vAccB+2*i,2), vr(vG,2), None, "op_sel:[0,1] op_sel_hi:[1,1]")
a("s_branch L_tail")
a.label("L_Xearly")
for j in range(4): a(f"ds_read_b128 {vr(164+4*j,4)}, v10 offset:{EX+j*1024}")
a("s_nop 6")
for i in range(8): pk("mul", vAccB+2*i, vr(vAccB+2*i,2), vr(vG,2), None, "op_sel:[0,1] op_sel_hi:[1,1]")
a("s_waitcnt lgkmcnt(0)")
tail_w()
for i in range(8): pk("add", vAccA+2*i, vr(vAccA+2*i,2), vr(164+2*i,2))
for i in range(8): pk("fma", vAccA+2*i, vr(vAccA+2*i,2), vr(vG,2), vr(vAccB+2*i,2), "op_sel:[0,0,0] op_sel_hi:[1,0,1]")
cvt8(164, vAccA)
for i in range(16): a(f"v_mov_b32 v{vAccB+i}, 0")
for jj in range(2):
    a(f"v_permlane32_swap_b32 v{164+4*jj}, v{164+4*jj+2}")
    a(f"v_permlane32_swap_b32 v{164+4*jj+1}, v{164+4*jj+3}")
for jj in range(2):
    a(f"buffer_store_dwordx4 {vr(164+4*jj,4)}, v16, {sr(sOUT,4)}, s{sT} offen offset:{jj*32}")
a("s_branch L_tail")

a.label("L_Y")
a("s_waitcnt lgkmcnt(0)")
a("s_barrier")
a(f"s_lshl_b32 s{t0}, s{sW4}, 14")
a(f"s_add_u32 s{t0}, s{t0}, {WO}")
a(f"v_add_u32 v3, s{t0}, v{vL16}")
a(f"s_cmp_eq_u32 s{sType}, 0")
a("s_cbranch_scc1 L_Yphi")
for rt in range(4):
    for q in range(4):
        a(f"ds_read_b128 {vr(20+16*rt+4*q,4)}, v3 offset:{rt*4096+q*1024}")
    if rt == 2: a("s_waitcnt lgkmcnt(8)")
a(f"s_lshl_b32 s{t0}, s{sHq}, 2")
a(f"s_add_u32 s{t0}, s{t0}, s{sW4}")
a(f"s_lshl_b32 s{t0}, s{t0}, 4")
a(f"s_add_u32 s{t0}, s{t0}, s{sRb}")
a(f"s_lshl_b32 s{t2}, s{t0}, 12")
a(f"s_add_u32 s{t2}, s{t2}, {KVP}")
a(f"s_lshl_b32 s{t0}, s{t0}, 3")
a(f"s_add_u32 s{t0}, s{t0}, {FLGK}")
a("s_waitcnt lgkmcnt(0)")
for i in range(16): pk("add", 20+2*i, vr(20+2*i,2), vr(52+2*i,2))
for i in range(8): pk("add", 20+2*i, vr(20+2*i,2), vr(36+2*i,2))
for q in range(4): a(st4(20+4*q, vL16, t2, q*1024))
a("s_branch L_Ypub")
a.label("L_Yphi")
for q in range(8): a(f"ds_read_b128 {vr(20+4*q,4)}, v3 offset:{q*1024}")
a(f"s_lshl_b32 s{t1}, s{sHq}, 19")
a(f"s_lshl_b32 s{t2}, s{sT}, 11")
a(f"s_add_u32 s{t1}, s{t1}, s{t2}")
a(f"s_add_u32 s{t1}, s{t1}, {PHQ}")
a(f"s_lshl_b32 s{t0}, s{sHq}, 6")
a(f"s_add_u32 s{t0}, s{t0}, s{sT}")
a(f"s_lshl_b32 s{t0}, s{t0}, 3")
a(f"s_add_u32 s{t0}, s{t0}, {FLGP}")
a("s_waitcnt lgkmcnt(0)")
for q in range(8):
    a(st4(20+4*q, vL16, t1, (q & 1)*1024))
    if q & 1: a(f"s_add_u32 s{t1}, s{t1}, 131072")
a.label("L_Ypub")
def sentinel():
    a(f"s_lshl_b32 s{t1}, s{sC}, 3")
    a(f"s_add_u32 s{t1}, s{t1}, s{sWave}")
    a(f"s_lshl_b32 s{t1}, s{t1}, 5")
    a(f"s_add_u32 s{t1}, s{t1}, s{sH}")
    a(f"s_lshl_b32 s{t1}, s{t1}, 10")
    a(f"s_add_u32 s{t1}, s{t1}, {OA}")
    for i in range(4): a(f"v_mov_b32 v{40+i}, -1")
    a(st4(40, vL16, t1))
post_flag(t0)
kvq_prep()
stamp(3)
poll(vPoll)
ldQ(0); ldK(0)
for g in range(10): ldG(g)
a(f"s_lshl_b32 s{t0}, s{sH}, 7")
a(f"s_add_u32 s{t0}, s{t0}, {FLGK}")
a(f"v_lshlrev_b32 v2, 3, v{vLane}")
a(f"v_add_u32 v2, s{t0}, v2")
a(f"s_lshl_b32 s{sT}, s{sC}, 3")
a(f"s_lshl_b32 s{t0}, s{sW4}, 1")
a(f"s_add_u32 s{sT}, s{sT}, s{t0}")
a(f"s_lshl_b32 s{t0}, s{sHq2}, 6")
a(f"s_add_u32 s{t0}, s{t0}, s{sT}")
a(f"s_lshl_b32 s{t0}, s{t0}, 3")
a(f"s_add_u32 s{t0}, s{t0}, {FLGP}")
a(f"v_and_b32 v3, 1, v{vLane}")
a(f"v_lshl_add_u32 v3, v3, 3, s{t0}")
a(f"v_cmp_gt_u32 s[{t0}:{t1}], 16, v{vLane}")
a(f"v_cndmask_b32 v{vPoll}, v3, v2, s[{t0}:{t1}]")
poll(vPoll)
stamp(4)
a(f"s_lshl_b32 s{t0}, s{sH}, 16")
a(f"s_lshl_b32 s{t1}, s{sW4}, 10")
a(f"s_add_u32 s{t0}, s{t0}, s{t1}")
a(f"s_add_u32 s{t0}, s{t0}, {KVP}")
vKV = 52
for rb in range(16):
    a(f"buffer_load_dwordx4 {vr(vKV+4*rb,4)}, v{vL16}, {sr(sWS,4)}, s{t0} offen sc1")
    if rb < 15: a(f"s_add_u32 s{t0}, s{t0}, 4096")
a(f"{M32} {vr(vS,16)}, {vr(vK,4)}, {vr(vQ,4)}, 0")
wo_dma()
if SENT: sentinel()
wo_addr()
tail_addr()
a(f"s_lshr_b32 s{t0}, s{sW4}, 1")
a(f"s_lshl_b32 s{t0}, s{t0}, 10")
a(f"s_and_b32 s{t1}, s{sW4}, 1")
a(f"s_lshl_b32 s{t1}, s{t1}, 3")
a(f"s_add_u32 s{t0}, s{t0}, s{t1}")
a(f"v_add_u32 v2, s{t0}, v{vL16}")
a(f"s_waitcnt vmcnt({16+SENT})")
for st in (32, 16, 8, 4):
    for i in range(st//2): pk("add", vKV+2*i, vr(vKV+2*i,2), vr(vKV+st+2*i,2))
cvt8(vKV+4, vKV, 2)
a(f"ds_write_b64 v2, {vr(vKV+4,2)} offset:{KVX}")
a(f"s_mov_b32 s{sTq}, s{sWave}")
a("s_waitcnt vmcnt(0) lgkmcnt(0)")
stamp(5)
a("s_setprio 0")
a("s_barrier")
stamp(6)
for k in range(3): a(o_rd(0, k))
attention(True)
stamp(7)
a("s_setprio 2")
a("s_barrier")
stamp(8)
a(f"s_swappc_b64 {sr(sRET,2)}, {sr(sSUB,2)}")
a("s_barrier")
if not SENT: post_flag(t0)
a("s_setprio 0")
a(f"s_add_u32 s{t0}, s{sTe}, 4")
load_g(vG+2, t0)
tail_w()
a("s_nop 1")
for i in range(16): a(f"v_mov_b32 v{vAccB+i}, 0")

a.label("L_tail")
if SENT:
    a(f"s_mov_b32 s{sCnt}, 0x100000")
    a(f"s_add_u32 s{t2}, s{sRt}, 4096")
    a("s_waitcnt lgkmcnt(0)")
    a.label("L_spoll")
    for i in range(8):
        a(f"buffer_load_dwordx4 {vr(20+4*i,4)}, v{vL16}, {sr(sWS,4)}, s{sRt if i < 4 else t2} offen offset:{(i&3)*1024} sc1")
    for i in range(8):
        a(f"s_waitcnt vmcnt({7-i})")
        a(f"{M32} {vr(52,16)}, {vr(100+4*i,4)}, {vr(20+4*i,4)}, {'0' if i == 0 else vr(52,16)}")
        if i == 0: a(f"v_max_u32 v2, v20, v21")
        else: a(f"v_max3_u32 v2, v2, v{20+4*i}, v{21+4*i}")
        a(f"v_max3_u32 v2, v2, v{22+4*i}, v{23+4*i}")
    a("v_cmp_eq_u32 vcc, -1, v2")
    a("s_cmp_eq_u64 vcc, 0")
    a("s_cbranch_scc1 L_spolld")
    a(f"s_sub_u32 s{sCnt}, s{sCnt}, 1")
    a(f"s_cmp_lg_u32 s{sCnt}, 0")
    a("s_cbranch_scc1 L_spoll")
    a.label("L_spolld")
    stamp(9)
    a("s_nop 3")
else:
    poll(15)
    stamp(9)
    loadn(20, 8, sRt)
    a("s_waitcnt lgkmcnt(0)")
    for i in range(8):
        a(f"s_waitcnt vmcnt({7-i})")
        a(f"{M32} {vr(52,16)}, {vr(100+4*i,4)}, {vr(20+4*i,4)}, {'0' if i == 0 else vr(52,16)}")
a(f"s_add_u32 s{t0}, s{sTe}, 4")
a(f"s_lshl_b32 s{t0}, s{t0}, 15")
a(f"s_add_u32 s{t0}, s{t0}, s{sN0}")
for j in range(4):
    for i in range(2): pk("fma", 52+4*j+2*i, vr(52+4*j+2*i,2), vr(vG+2,2), vr(vAccB+4*j+2*i,2), "op_sel:[0,0,0] op_sel_hi:[1,0,1]")
    a(f"ds_write_b128 v8, {vr(52+4*j,4)} offset:{j*32}")
a("s_waitcnt lgkmcnt(0)")
a("s_barrier")
stamp(10)
for k in range(4): a(f"ds_read_b128 {vr(20+4*k,4)}, v9 offset:{RED+k*4608}")
a("s_waitcnt lgkmcnt(0)")
for i in range(4): pk("add", 20+2*i, vr(20+2*i,2), vr(28+2*i,2))
for i in range(2): pk("add", 20+2*i, vr(20+2*i,2), vr(24+2*i,2))
cvt8(24, 20, 2)
a(f"buffer_store_dwordx2 {vr(24,2)}, v11, {sr(sOUT,4)}, s{t0} offen")
a(f"s_or_b32 s{t0}, s2, s{sWave}")
a(f"s_cmp_lg_u32 s{t0}, 0")
a("s_cbranch_scc1 L_noepoch")
a("s_mov_b64 exec, 1")
a(f"buffer_store_dwordx2 {vr(vTAG,2)}, v{vZERO}, {sr(sWS,4)}, 0 offen sc1")
a("s_mov_b64 exec, -1")
a.label("L_noepoch")
if DEBUG_TS:
    a("s_waitcnt vmcnt(0)")
    stamp(11)
    a(f"s_lshl_b32 s{t0}, s2, 3")
    a(f"s_add_u32 s{t0}, s{t0}, s{sWave}")
    a(f"s_lshl_b32 s{t0}, s{t0}, 6")
    a(f"s_add_u32 s{t0}, s{t0}, {TS}")
    for i in range(12): a(f"v_mov_b32 v{20+i}, s{sTS+i}")
    a("s_mov_b64 exec, 1")
    for i in range(3):
        a(f"buffer_store_dwordx4 {vr(20+4*i,4)}, v{vZERO}, {sr(sWS,4)}, s{t0} offen offset:{16*i}")
if opt("until", 0):
    a.label("L_spin2")
    a(f"s_memrealtime s[{t2}:{t3}]")
    a("s_waitcnt lgkmcnt(0)")
    a(f"s_sub_u32 s{t2}, s{t2}, s100")
    a(f"s_cmp_lt_u32 s{t2}, {opt('until', 0)}")
    a("s_cbranch_scc1 L_spin2")
a.label("L_end")
a("s_endpgm")

vR = 148
a.label("L_reduce")
a(f"s_mul_i32 s{t0}, s{sTq}, {PSLOT}")
a(f"s_add_u32 s{t0}, s{t0}, {PART}")
a(f"v_add_u32 v2, s{t0}, v{vL16}")
a(f"v_lshl_add_u32 v3, v{vLane}, 2, s{t0}")
for p in range(4):
    a(f"ds_read_b128 {vr(vR+12*p,4)}, v2 offset:{p*2304}")
    a(f"ds_read_b128 {vr(vR+12*p+4,4)}, v2 offset:{p*2304+1024}")
    a(f"ds_read_b32 v{vR+12*p+8}, v3 offset:{p*2304+2048}")
a(f"s_lshl_b32 s{t5}, s{sC}, 3")
a(f"s_add_u32 s{t5}, s{t5}, s{sTq}")
a(f"s_mov_b32 s{t2}, {f32(2.0**40)}")
a(f"s_mov_b32 s{t3}, {f32(2.0**120)}")
a("s_waitcnt lgkmcnt(6)")
for i in range(4): pk("add", vR+2*i, vr(vR+2*i,2), vr(vR+12+2*i,2))
a(f"v_add_f32 v{vR+8}, v{vR+8}, v{vR+20}")
a("s_waitcnt lgkmcnt(0)")
for i in range(4): pk("add", vR+24+2*i, vr(vR+24+2*i,2), vr(vR+36+2*i,2))
a(f"v_add_f32 v{vR+32}, v{vR+32}, v{vR+44}")
a(f"v_add_f32 v{vR+8}, v{vR+8}, v{vR+32}")
for i in range(4): pk("add", vR+2*i, vr(vR+2*i,2), vr(vR+24+2*i,2))
a(f"v_cmp_le_f32 vcc, 1.0, v{vR+8}")
a(f"v_cmp_ge_f32 s[{t0}:{t1}], s{t2}, v{vR+8}")
a(f"v_add_f32 v2, abs(v{vR}), abs(v{vR+1})")
a(f"v_add_f32 v3, abs(v{vR+2}), abs(v{vR+3})")
for i in range(4, 8): a(f"v_add_f32 v{2+(i&1)}, v{2+(i&1)}, abs(v{vR+i})")
a(f"s_and_b64 vcc, vcc, s[{t0}:{t1}]")
a(f"v_add_f32 v2, v2, v3")
a(f"v_cmp_ge_f32 s[{t0}:{t1}], s{t3}, v2")
a(f"s_and_b64 vcc, vcc, s[{t0}:{t1}]")
a(f"s_cmp_eq_u64 vcc, -1")
a("s_cbranch_scc1 L_slow" if FORCE_SLOW else "s_cbranch_scc0 L_slow")
a.label("L_norm")
a(f"v_rcp_f32 v{vR+8}, v{vR+8}")
a(f"s_lshl_b32 s{t0}, s{t5}, 5")
a(f"s_add_u32 s{t0}, s{t0}, s{sH}")
a(f"s_lshl_b32 s{t1}, s{t0}, 10")
a(f"s_add_u32 s{t2}, s{t1}, {OA}")
for i in range(4): pk("mul", vR+2*i, vr(vR+2*i,2), vr(vR+8,2), None, "op_sel:[0,0] op_sel_hi:[1,0]")
cvt8(vR+12, vR, 4)
if SENT:
    for i in range(4): a(f"v_min_u32 v{vR+12+i}, -2, v{vR+12+i}")
a(st4(vR+12, vL16, t2))
a(f"s_lshl_b32 s{t0}, s{t0}, 3")
a(f"s_add_u32 s{t0}, s{t0}, {FLGO}")
a(f"s_setpc_b64 {sr(sRET,2)}")

a.label("L_codeend")
a.label("L_slow")
sQ_, sK_, sV_, sS_, sP_, sO_, sM_, sm_ = 160, 164, 168, 176, 192, 200, 216, 232
a(f"s_lshl_b32 s{t0}, s{sH}, 16")
a(f"s_lshl_b32 s{t1}, s{t5}, 10")
a(f"s_add_u32 s{t1}, s{t1}, s{t0}")
a(f"s_add_u32 s{t1}, s{t1}, {QA}")
a(f"buffer_load_dwordx4 {vr(sQ_,4)}, v{vL16}, {sr(sWS,4)}, s{t1} offen sc1")
a(f"s_add_u32 s{t1}, s{t0}, {KA}")
a(f"s_mov_b32 s{t2}, 64")
a(f"v_mov_b32 v{sm_}, 0xff7fffff")
a.label("L_slow1")
a(f"buffer_load_dwordx4 {vr(sK_,4)}, v{vL16}, {sr(sWS,4)}, s{t1} offen sc1")
a("s_waitcnt vmcnt(0)")
a(f"{M32} {vr(sS_,16)}, {vr(sK_,4)}, {vr(sQ_,4)}, 0")
for i in range(8): a(f"v_max3_f32 v{sm_}, v{sm_}, v{sS_+2*i}, v{sS_+2*i+1}")
a(f"s_add_u32 s{t1}, s{t1}, 1024")
a(f"s_sub_u32 s{t2}, s{t2}, 1")
a(f"s_cmp_lg_u32 s{t2}, 0")
a("s_cbranch_scc1 L_slow1")
a(f"v_mov_b32 v{sm_+1}, v{sm_}")
a(f"v_permlane32_swap_b32 v{sm_}, v{sm_+1}")
a(f"v_max_f32 v{sm_}, v{sm_}, v{sm_+1}")
for i in range(16): a(f"v_sub_f32 v{sM_+i}, 0, v{sm_}")
for i in range(16): a(f"v_mov_b32 v{sO_+i}, 0")
for i in range(8): a(f"v_mov_b32 v{sV_+i}, 0x3f803f80")
a(f"s_add_u32 s{t1}, s{t0}, {KA}")
a(f"s_add_u32 s{t3}, s{t0}, {VA}")
a(f"s_mov_b32 s{t2}, 64")
a.label("L_slow2")
a(f"buffer_load_dwordx4 {vr(sK_,4)}, v{vL16}, {sr(sWS,4)}, s{t1} offen sc1")
a(f"s_mov_b64 exec, {sr(sVM,2)}")
a(f"buffer_load_dwordx4 {vr(sV_,4)}, v{vVld}, {sr(sWS,4)}, s{t3} offen sc1")
a(f"buffer_load_dwordx4 {vr(sV_+4,4)}, v{vVld}, {sr(sWS,4)}, s{t3} offen offset:512 sc1")
a("s_mov_b64 exec, -1")
a("s_waitcnt vmcnt(0)")
a(f"{M32} {vr(sS_,16)}, {vr(sK_,4)}, {vr(sQ_,4)}, {vr(sM_,16)}")
for i in range(16): a(f"v_exp_f32 v{sS_+i}, v{sS_+i}")
cvt8(sP_, sS_)
a(f"{M32} {vr(sO_,16)}, {vr(sV_,4)}, {vr(sP_,4)}, {vr(sO_,16)}")
a(f"{M32} {vr(sO_,16)}, {vr(sV_+4,4)}, {vr(sP_+4,4)}, {vr(sO_,16)}")
a(f"s_add_u32 s{t1}, s{t1}, 1024")
a(f"s_add_u32 s{t3}, s{t3}, 1024")
a(f"s_sub_u32 s{t2}, s{t2}, 1")
a("s_nop 7")
a(f"s_cmp_lg_u32 s{t2}, 0")
a("s_cbranch_scc1 L_slow2")
for i in range(9): a(f"v_mov_b32 v{vR+i}, v{sO_+i}")
a("s_branch L_norm")

body, nn = a.finish(verbose="-v" in sys.argv)
hdr = open("cdna_kernels/" + NAME + ".s.ref").read().split("; Override launch")[0]
text = hdr + f"""; @launch grid=(256,1,1) block=(512,1,1) lds=163840
.amdgcn_target "amdgcn-amd-amdhsa--gfx950"
.text
.globl {NAME}_kernel
.p2align 8
.type {NAME}_kernel,@function
{NAME}_kernel:
{body}
.section .rodata,"a"
.p2align 6
.amdhsa_kernel {NAME}_kernel
  .amdhsa_next_free_vgpr 256
  .amdhsa_next_free_sgpr 102
  .amdhsa_accum_offset 256
  .amdhsa_group_segment_fixed_size 0
  .amdhsa_kernarg_size 88
  .amdhsa_user_sgpr_count 2
  .amdhsa_user_sgpr_kernarg_segment_ptr 1
  .amdhsa_system_sgpr_workgroup_id_x 1
.end_amdhsa_kernel
"""
out = [x for x in sys.argv[1:] if not x.startswith("-")]
path = out[0] if out else "cdna_kernels/" + NAME + ".s"
open(path, "w").write(text)
print("wrote", path, "nops inserted:", nn)
```
